```python
import torch

def _softmax(x, axis=-1):
    return torch.softmax(x, dim=axis)
def _gelu(x):
    return torch.nn.functional.gelu(x, approximate="tanh")
def _silu(x):
    return torch.nn.functional.silu(x)
def _sigmoid(x):
    return torch.sigmoid(x)
def _layernorm(x, axis=-1, eps=1e-5):
    m = x.mean(dim=axis, keepdim=True)
    v = x.var(dim=axis, keepdim=True, unbiased=False)
    return (x - m) / torch.sqrt(v + eps)
def _scatter_add(tgt, idx, src, axis=0):
    return tgt.clone().index_add_(axis, idx, src)
def _segment_sum(src, seg, n):
    out = torch.zeros((n,) + src.shape[1:], dtype=src.dtype)
    return out.index_add_(0, seg, src)
def _pad(x, pw):
    flat = tuple(v for pair in reversed(pw) for v in pair)
    return torch.nn.functional.pad(x, flat)

kernel_name = 'standalone__mha_block_cached__near_ridge'

def setup_inputs():

    _w = (lambda a: (lambda t: t.to(torch.bfloat16) if t.is_floating_point() else t)(torch.as_tensor(a)))
    B, Sq, D = 16, 112, 576
    H, Sk, Dh = 32, 1024, 128
    return {
        "x": _w((lambda *s: torch.randn(*s, dtype=torch.bfloat16) * 0.8)(B, Sq, D)),
        "k_cache": _w((lambda *s: torch.randn(*s, dtype=torch.bfloat16) * 0.8)(B, H, Sk, Dh)),
        "v_cache": _w((lambda *s: torch.randn(*s, dtype=torch.bfloat16) * 0.05)(B, H, Sk, Dh)),
        "wq": _w((lambda *s: torch.randn(*s, dtype=torch.bfloat16) * 0.8)(D, H * Dh) * (D ** -0.5)),
        "wo": _w((lambda *s: torch.randn(*s, dtype=torch.bfloat16) * 0.05)(H * Dh, D) * ((H * Dh) ** -0.5)),
    }

def reference(x, k_cache, v_cache, wq, wo):
    B, Sq, D = x.shape
    H, Dh = 32, 128
    q = (lambda x, *d: x.permute(*d))((x @ wq).reshape(B, Sq, H, Dh), 0, 2, 1, 3)
    scores = torch.einsum("bhqd,bhkd->bhqk", q, k_cache) * (Dh ** -0.5)
    p = _softmax(scores, axis=-1)
    o = torch.einsum("bhqk,bhkd->bhqd", p, v_cache)
    return (lambda x, *d: x.permute(*d))(o, 0, 2, 1, 3).reshape(B, Sq, H * Dh) @ wo
```

```python
import math, struct
NAME = "standalone__mha_block_cached__near_ridge"
class Asm:
    def __init__(s): s.l = []
    def __call__(s, t):
        for x in t.strip().split("\n"): s.l.append("    " + x.strip())
    def label(s, n): s.l.append(n + ":")
    def text(s): return "\n".join(s.l) + "\n"
def vr(a, n=1): return f"v{a}" if n == 1 else f"v[{a}:{a+n-1}]"
def sr(a, n=1): return f"s{a}" if n == 1 else f"s[{a}:{a+n-1}]"
def f32(x): return hex(struct.unpack("<I", struct.pack("<f", x))[0])
def mfma(d, a, b, c=None):
    cs = "0" if c == 0 else vr(d, 16)
    return f"v_mfma_f32_32x32x16_bf16 {vr(d,16)}, {vr(a,4)}, {vr(b,4)}, {cs}"
def srd(A, d, p, off, nrec):
    if off is None:
        A(f"s_mov_b32 s{d}, s{p}\ns_mov_b32 s{d+1}, s{p+1}")
    else:
        A(f"s_add_u32 s{d}, s{p}, {off}\ns_addc_u32 s{d+1}, s{p+1}, 0")
    A(f"s_mov_b32 s{d+2}, {nrec}\ns_mov_b32 s{d+3}, 0x00020000")
def kdesc(name, vg, sg=96):
    acc = (vg + 3) // 4 * 4
    return f""".amdhsa_kernel {name}
  .amdhsa_next_free_vgpr {vg}
  .amdhsa_next_free_sgpr {sg}
  .amdhsa_accum_offset {acc}
  .amdhsa_group_segment_fixed_size 0
  .amdhsa_kernarg_size 64
  .amdhsa_user_sgpr_count 2
  .amdhsa_user_sgpr_kernarg_segment_ptr 1
  .amdhsa_system_sgpr_workgroup_id_x 1
.end_amdhsa_kernel
"""
def khead(name):
    return f".globl {name}\n.p2align 8\n.type {name},@function\n{name}:\n"
def interleave(main, fill, start=0, every=1):
    out = []; fi = 0
    for i, m in enumerate(main):
        out.append(m)
        if i >= start and (i - start) % every == 0 and fi < len(fill):
            out.append(fill[fi]); fi += 1
    return out + fill[fi:]
```

```python
from common import *
def gen_k1(opt):
    A = Asm()
    NT = opt.get("nt", " nt")
    O, Q, S, P, F = 0, 64, 96, 128, 144
    X = 64
    AK, AV = 208, 216
    KA0, VA0, WA0 = 220, 221, 222
    DK, DV, DW, DX = 224, 228, 229, 230
    M, MC, AL, L2, T0, T1, CC, VL, OA = 232, 234, 236, 238, 240, 241, 242, 244, 245
    c = (128 ** -0.5) * math.log2(math.e)
    A("""s_cmp_ge_u32 s2, 512
    s_cbranch_scc1 K1_END
    s_load_dwordx4 s[24:27], s[0:1], 0
    s_load_dwordx4 s[28:31], s[0:1], 16
    s_load_dwordx2 s[32:33], s[0:1], 56
    s_and_b32 s3, s2, 3
    s_lshl_b32 s3, s3, 3
    s_bfe_u32 s34, s2, 0x30003
    s_add_u32 s34, s34, s3
    s_bfe_u32 s3, s2, 0x10002
    s_lshl_b32 s3, s3, 3
    s_lshr_b32 s35, s2, 6
    s_add_u32 s35, s35, s3""")
    A(f"""v_lshrrev_b32 v{T0}, 6, v0
    v_and_b32 v{VL}, 63, v0
    s_lshl_b32 s37, s35, 5
    v_readfirstlane_b32 s36, v{T0}
    s_add_u32 s37, s37, s34
    s_lshl_b32 s37, s37, 18
    s_lshl_b32 s38, s34, 8
    s_mul_i32 s39, s35, 129024
    s_lshl_b32 s40, s36, 12
    s_waitcnt lgkmcnt(0)""")
    srd(A, 12, 30, "s38", 576*8192); A("s_sub_u32 s14, s14, s38")
    srd(A, 16, 24, "s39", 129024)
    srd(A, 4, 26, "s37", 262144)
    srd(A, 8, 28, "s37", 262144)
    srd(A, 20, 32, None, 1792*8192)
    A(f"""v_lshrrev_b32 v{T0}, 4, v0
    v_and_b32 v{T1}, 3, v{T0}
    v_lshrrev_b32 v{T0}, 6, v0
    v_lshl_add_u32 v{T0}, v{T0}, 4, v{T1}
    v_and_b32 v{M}, 15, v0
    v_lshlrev_b32 v{MC}, 2, v{T1}
    v_xor_b32 v{MC}, v{MC}, v{M}
    v_lshlrev_b32 v{MC}, 4, v{MC}
    v_lshl_add_u32 v{DW}, v{T0}, 13, v{MC}
    v_lshl_add_u32 v{DV}, v{T0}, 8, v{MC}
    v_xor_b32 v{MC}, v{T1}, v{M}
    v_lshlrev_b32 v{MC}, 4, v{MC}
    v_lshl_add_u32 v{DK}, v{T0}, 8, v{MC}
    v_xor_b32 v{DK+1}, 64, v{DK}
    v_xor_b32 v{DK+2}, 0x80, v{DK}
    v_xor_b32 v{DK+3}, 0xc0, v{DK}
    v_and_b32 v{T0}, 31, v0
    s_lshl_b32 s41, s36, 5
    v_add_u32 v{T0}, s41, v{T0}
    v_mul_u32_u24 v{DX}, 1152, v{T0}
    v_lshrrev_b32 v{T1}, 5, v{VL}
    v_lshl_add_u32 v{DX}, v{T1}, 4, v{DX}""")
    def issue_w(n):
        r = []
        for s in range(4):
            r.append(f"buffer_load_dwordx4 {vr(X+(n%5)*16+s*4,4)}, v{DX}, s[16:19], 0 offen offset:{n*128+s*32}")
        for j in range(4):
            r.append(f"s_add_u32 m0, s40, {(n%5)*16384+j*1024}\ns_mov_b32 s42, {(n*64+j*4)*8192}\nbuffer_load_dwordx4 v{DW}, s[12:15], s42 offen lds")
        return r
    def issue_kv(isv, m0, soff):
        r = [f"s_add_u32 m0, s40, {m0}\ns_nop 0"]
        for j in range(4):
            r.append(f"buffer_load_dwordx4 v{DV if isv else DK+j}, s[{8 if isv else 4}:{11 if isv else 7}], {soff} offen offset:{j*1024}{NT} lds")
        return r
    for n in range(4):
        for x in issue_w(n): A(x)
    A(f"""s_mul_i32 s41, s35, 112
    v_cmp_gt_u32 vcc, 112, v{T0}
    v_add_u32 v{T0}, s41, v{T0}
    v_lshrrev_b32 v{OA}, 5, v{T0}
    v_lshlrev_b32 v{OA}, 18, v{OA}
    v_and_b32 v{T0}, 31, v{T0}
    v_lshl_add_u32 v{OA}, v{T0}, 4, v{OA}
    v_lshl_add_u32 v{OA}, v{T1}, 9, v{OA}
    s_lshl_b32 s41, s34, 13
    v_add_u32 v{OA}, s41, v{OA}
    v_mov_b32 v{T0}, 0x7fff0000
    v_cndmask_b32 v{OA}, v{T0}, v{OA}, vcc""")
    A(f"""v_and_b32 v{T0}, 31, v0
    v_lshlrev_b32 v{KA0}, 8, v{T0}
    v_and_b32 v{T0}, 15, v0
    v_xor_b32 v{T0}, v{T0}, v{T1}
    v_lshl_add_u32 v{KA0}, v{T0}, 4, v{KA0}
    v_bfe_u32 v{T0}, v0, 2, 2
    v_mul_u32_u24 v{VA0}, 320, v{T0}
    v_bfe_u32 v{T0}, v0, 4, 1
    v_lshl_add_u32 v{VA0}, v{T0}, 5, v{VA0}
    v_and_b32 v{T0}, 1, v0
    v_lshl_add_u32 v{VA0}, v{T0}, 4, v{VA0}
    v_bfe_u32 v{T0}, v0, 1, 1
    v_lshl_add_u32 v{VA0}, v{T0}, 3, v{VA0}
    v_lshl_add_u32 v{WA0}, v{T1}, 11, v{VA0}
    v_lshl_add_u32 v{VA0}, v{T1}, 10, v{VA0}
    v_mov_b32 v{CC}, {f32(c)}""")
    def taddr(base, slot):
        return [f"v_add_u32 v{AV}, {slot}, v{base}"] + [f"v_xor_b32 v{AV+t}, {hex(64*t)}, v{AV}" for t in range(1, 4)]
    def trreads(step):
        return [f"ds_read_b64_tr_b16 {vr(F+(s*4+t)*4+jr*2,2)}, v{AV+t} offset:{(16*s+step*jr)*256}"
                for s in range(4) for t in range(4) for jr in range(2)]
    PF = opt.get("pf", 0)
    def nvm(n): return 8 if n < 9 else (4 if n < 41 else 0)
    for n in range(9):
        A(f"s_waitcnt vmcnt({sum(nvm(k) for k in range(n+1, n+4))})\ns_barrier")
        for x in taddr(WA0, (n % 5)*16384): A(x)
        rd = trreads(4)
        for x in rd[:8]: A(x)
        if n + 4 < 9: iss = issue_w(n+4)
        else:
            k = n + 4 - 9
            A(f"s_mov_b32 s42, {(k//2)*16384}")
            iss = issue_kv(k & 1, ((n+4) % 5)*16384, "s42")
        for x in iss: A(x)
        for i in range(16):
            if 8+2*i < 32: A(rd[8+2*i]); A(rd[9+2*i])
            A(f"s_waitcnt lgkmcnt({min(8, 30-2*i)})")
            A(mfma(O+(i & 3)*16, F+i*4, X+(n % 5)*16+(i >> 2)*4, 0 if n == 0 and i < 4 else None))
    A("s_nop 7\ns_nop 4")
    for i in range(32):
        A(f"v_cvt_pk_bf16_f32 v{Q+i}, v{O+2*i}, v{O+2*i+1}")
    for i in range(64): A(f"v_mov_b32 v{O+i}, 0")
    A(f"""v_mov_b32 v{M}, 0xff800000
    v_mov_b32 v{L2}, 0
    v_mov_b32 v{L2+1}, 0
    s_mov_b32 s43, {4*16384}
    s_mov_b32 s44, 0
    s_mov_b32 s45, {3*16384}
    s_mov_b32 s46, {2*16384}
    s_mov_b32 s47, 14""")
    def iteration(wk, wv, load):
        A(f"s_waitcnt vmcnt({wk})\ns_barrier")
        A(f"v_add_u32 v{AK}, s43, v{KA0}")
        for m in range(1, 8): A(f"v_xor_b32 v{AK+m}, {hex(32*m)}, v{AK}")
        rd = [f"ds_read_b128 {vr(F+i*4,4)}, v{AK+(i&7)} offset:{(i>>3)*8192}" for i in range(16)]
        for x in rd[:8]: A(x)
        if load:
            for x in issue_kv(0, "s45", "s46"): A(x)
        for i in range(16):
            if i < 8: A(rd[8+i])
            A(f"s_waitcnt lgkmcnt({min(8, 15-i)})")
            A(mfma(S+(i >> 3)*16, F+i*4, Q+(i & 7)*4, 0 if (i & 7) == 0 else None))
        A(f"s_waitcnt vmcnt({wv})\ns_barrier")
        for x in taddr(VA0, "s44"): A(x)
        if load:
            for x in issue_kv(1, "s43", "s46"): A(x)
        else: A("s_nop 5")
        A(f"""s_mov_b32 s45, s44
        s_add_u32 s43, s44, 16384
        s_cmp_eq_u32 s43, {5*16384}
        s_cselect_b32 s43, 0, s43
        s_add_u32 s44, s43, 16384
        s_cmp_eq_u32 s44, {5*16384}
        s_cselect_b32 s44, 0, s44
        s_add_u32 s46, s46, 16384""")
        rd = trreads(8)
        sm = [f"v_max3_f32 v{T0}, v{S}, v{S+1}, v{S+2}", f"v_max3_f32 v{T1}, v{S+3}, v{S+4}, v{M}"]
        for i in range(5, 31, 2):
            t = T0 if ((i >> 1) & 1) == 0 else T1
            sm.append(f"v_max3_f32 v{t}, v{t}, v{S+i}, v{S+i+1}")
        sm.append(f"v_max3_f32 v{T0}, v{T0}, v{T1}, v{S+31}")
        for x in interleave(sm, rd[:12]): A(x)
        A(f"""v_mov_b32 v{T1}, v{T0}
        s_nop 1
        v_permlane32_swap_b32 v{T1}, v{T0}
        s_nop 1
        v_max_f32 v{T0}, v{T0}, v{T1}
        v_mul_f32 v{MC}, v{CC}, v{T0}
        v_fma_f32 v{AL}, v{M}, v{CC}, -v{MC}
        v_mov_b32 v{M}, v{T0}
        v_exp_f32 v{AL}, v{AL}
        s_waitcnt lgkmcnt(4)""")
        sm = []
        for i in range(0, 32, 2):
            sm.append(f"v_pk_fma_f32 {vr(S+i,2)}, {vr(S+i,2)}, {vr(CC,2)}, {vr(MC,2)} op_sel_hi:[1,0,0] neg_lo:[0,0,1] neg_hi:[0,0,1]")
        sm.append(f"v_pk_mul_f32 {vr(L2,2)}, {vr(L2,2)}, {vr(AL,2)} op_sel_hi:[1,0]")
        for x in interleave(sm, rd[12:22]): A(x)
        A("s_waitcnt lgkmcnt(4)")
        ex = [f"v_exp_f32 v{S+i}, v{S+i}" for i in range(32)]
        sc = [f"v_pk_mul_f32 {vr(O+i,2)}, {vr(O+i,2)}, {vr(AL,2)} op_sel_hi:[1,0]" for i in range(0, 64, 2)]
        for x in interleave(interleave(ex, sc), rd[22:], 0, 2): A(x)
        fin = []
        for i in range(16):
            fin.append(f"v_cvt_pk_bf16_f32 v{P+i}, v{S+2*i}, v{S+2*i+1}")
            fin.append(f"v_pk_add_f32 {vr(L2,2)}, {vr(L2,2)}, {vr(S+2*i,2)}")
        for x in fin[:10]: A(x)
        A("s_waitcnt lgkmcnt(0)")
        fi = 10
        for i in range(16):
            A(mfma(O+(i & 3)*16, F+i*4, P+(i >> 2)*4))
            for x in fin[fi:fi+3]: A(x)
            fi += 3
    A.label("K1_LOOP")
    iteration(12, 12, True)
    A("s_sub_u32 s47, s47, 1\ns_cmp_lg_u32 s47, 0\ns_cbranch_scc1 K1_LOOP")
    iteration(12, 8, False)
    iteration(4, 0, False)
    A(f"""v_add_f32 v{T0}, v{L2}, v{L2+1}
    v_mov_b32 v{T1}, v{T0}
    s_nop 1
    v_permlane32_swap_b32 v{T1}, v{T0}
    s_nop 1
    v_add_f32 v{T0}, v{T0}, v{T1}
    v_rcp_f32 v{AL}, v{T0}
    s_mov_b32 s42, 4096
    s_nop 7""")
    for m in range(8):
        for i in range(0, 8, 2):
            A(f"v_pk_mul_f32 {vr(O+m*8+i,2)}, {vr(O+m*8+i,2)}, {vr(AL,2)} op_sel_hi:[1,0]")
        for i in range(4):
            A(f"v_cvt_pk_bf16_f32 v{S+m*4+i}, v{O+m*8+2*i}, v{O+m*8+2*i+1}")
        A(f"buffer_store_dwordx4 {vr(S+m*4,4)}, v{OA}, s[20:23], {'s42' if m >= 4 else '0'} offen offset:{(m&3)*1024}{opt.get('ost','')}")
    A.label("K1_END")
    A("s_endpgm")
    return A.text(), 248
```

```python
from common import *
def gen_k2(opt):
    A = Asm()
    NST = 4
    ACC, OF, WF = 0, 64, 128
    VOA, VWD, VR0, VR1, VT, VT2, VL = 160, 161, 162, 163, 164, 165, 166
    A("""s_cmp_ge_u32 s2, 256
    s_cbranch_scc1 K2_END
    s_load_dwordx2 s[24:25], s[0:1], 32
    s_load_dwordx2 s[26:27], s[0:1], 40
    s_load_dwordx2 s[28:29], s[0:1], 56
    s_and_b32 s3, s2, 7
    s_lshl_b32 s3, s3, 5
    s_lshr_b32 s30, s2, 3
    s_add_u32 s3, s3, s30
    s_cmp_ge_u32 s3, 252
    s_cbranch_scc1 K2_END
    s_mul_i32 s30, s3, 7282
    s_lshr_b32 s30, s30, 16
    s_mul_i32 s31, s30, 9
    s_sub_u32 s31, s3, s31""")
    A(f"""v_lshrrev_b32 v{VT}, 6, v0
    v_and_b32 v{VL}, 63, v0
    s_nop 0
    v_readfirstlane_b32 s32, v{VT}
    s_lshl_b32 s33, s30, 19
    s_lshl_b32 s34, s32, 15
    s_add_u32 s33, s33, s34
    s_mul_i32 s34, s32, {512*1152}
    s_lshl_b32 s35, s31, 7
    s_add_u32 s34, s34, s35
    s_lshl_b32 s36, s32, 14
    s_waitcnt lgkmcnt(0)""")
    srd(A, 4, 28, "s33", 262144 + 32768)
    srd(A, 8, 24, "s34", 512*1152)
    A(f"s_sub_u32 s10, s10, s35")
    srd(A, 12, 26, None, 1792*1152)
    A(f"""v_lshlrev_b32 v{VOA}, 4, v{VL}
    v_lshrrev_b32 v{VT}, 3, v{VL}
    v_mul_u32_u24 v{VWD}, 1152, v{VT}
    v_lshrrev_b32 v{VT}, 2, v{VL}
    v_and_b32 v{VT}, 4, v{VT}
    v_and_b32 v{VT2}, 7, v{VL}
    v_xor_b32 v{VT}, v{VT}, v{VT2}
    v_lshl_add_u32 v{VWD}, v{VT}, 4, v{VWD}""")
    def issue(st):
        sl = st % NST
        r = []
        for ks in range(2):
            for rt in range(2):
                r.append(f"s_mov_b32 s37, {rt*262144 + st*2048}\nbuffer_load_dwordx4 {vr(OF+sl*16+(ks*2+rt)*4,4)}, v{VOA}, s[4:7], s37 offen offset:{ks*1024}")
        for j in range(4):
            r.append(f"s_add_u32 m0, s36, {sl*4096+j*1024}\ns_mov_b32 s37, {(st*32+j*8)*1152}\nbuffer_load_dwordx4 v{VWD}, s[8:11], s37 offen lds")
        return r
    for st in range(NST-1):
        for x in issue(st): A(x)
    A(f"""v_lshrrev_b32 v{VT}, 5, v{VL}
    v_lshlrev_b32 v{VR0}, 10, v{VT}
    v_bfe_u32 v{VT}, v{VL}, 2, 2
    v_lshl_add_u32 v{VR0}, v{VT}, 7, v{VR0}
    v_lshrrev_b32 v{VT}, 1, v{VT}
    v_lshl_add_u32 v{VR0}, v{VT}, 6, v{VR0}
    v_bfe_u32 v{VT}, v{VL}, 4, 1
    v_lshl_add_u32 v{VR0}, v{VT}, 5, v{VR0}
    v_and_b32 v{VT}, 1, v{VL}
    v_lshl_add_u32 v{VR0}, v{VT}, 4, v{VR0}
    v_bfe_u32 v{VT}, v{VL}, 1, 1
    v_lshl_add_u32 v{VR0}, v{VT}, 3, v{VR0}
    v_add_u32 v{VR0}, s36, v{VR0}
    v_xor_b32 v{VR1}, 64, v{VR0}""")
    for st in range(16):
        sl = st % NST
        nout = min(NST-2, 15-st) * 8
        A(f"s_waitcnt vmcnt({nout})")
        wf = WF + (st & 1) * 16
        for ks in range(2):
            for nt in range(2):
                for jr in range(2):
                    A(f"ds_read_b64_tr_b16 {vr(wf+(ks*2+nt)*4+jr*2,2)}, v{VR0+nt} offset:{sl*4096+(16*ks+4*jr)*128}")
        if st + NST - 1 < 16:
            for x in issue(st + NST - 1): A(x)
        for ks in range(2):
            for nt in range(2):
                A(f"s_waitcnt lgkmcnt({6-(ks*2+nt)*2})")
                for rt in range(2):
                    A(mfma(ACC+(nt*2+rt)*16, wf+(ks*2+nt)*4, OF+sl*16+(ks*2+rt)*4, 0 if (st == 0 and ks == 0) else None))
    A(f"v_add_u32 v{VT}, s36, v{VOA}\ns_lshl_b32 s37, s32, 11\nv_add_u32 v{VT2}, s37, v{VOA}\ns_nop 7\ns_nop 3")
    for i in range(16):
        A(f"ds_write_b128 v{VT}, {vr(ACC+4*i,4)} offset:{i*1024}")
    A(f"v_add_u32 v{VR0}, 65536, v{VT2}\ns_waitcnt lgkmcnt(0)\ns_barrier")
    for w in range(8):
        for c in range(2):
            A(f"ds_read_b128 {vr(w*8+c*4,4)}, v{VT2 if w < 4 else VR0} offset:{(w&3)*16384+c*1024}")
        if w == 6: A("s_waitcnt lgkmcnt(8)")
    A(f"""s_lshl_b32 s37, s30, 6
    s_and_b32 s38, s32, 2
    s_lshl_b32 s38, s38, 4
    s_add_u32 s37, s37, s38
    v_and_b32 v{VT}, 31, v{VL}
    v_add_u32 v{VT}, s37, v{VT}
    v_mul_u32_u24 v{VT}, 1152, v{VT}
    s_lshr_b32 s38, s32, 2
    s_lshl_b32 s38, s38, 6
    s_and_b32 s39, s32, 1
    s_lshl_b32 s39, s39, 5
    s_add_u32 s38, s38, s39
    s_add_u32 s38, s38, s35
    v_lshrrev_b32 v{VR1}, 5, v{VL}
    v_lshl_add_u32 v{VT}, v{VR1}, 4, v{VT}
    v_add_u32 v{VT}, s38, v{VT}
    s_waitcnt lgkmcnt(0)""")
    for step in (32, 16, 8):
        for i in range(0, step, 2):
            A(f"v_pk_add_f32 {vr(i,2)}, {vr(i,2)}, {vr(i+step,2)}")
    for i in range(4):
        A(f"v_cvt_pk_bf16_f32 v{8+i}, v{2*i}, v{2*i+1}")
    A(f"buffer_store_dwordx4 v[8:11], v{VT}, s[12:15], 0 offen")
    A.label("K2_END")
    A("s_endpgm")
    return A.text(), 168
```

```python
import sys, json
sys.path.insert(0, "gen")
from common import *
from k1 import gen_k1
from k2 import gen_k2
def build(opt, path):
    hdr = [l for l in open(f"cdna_kernels/{NAME}.s.ref").read().split("\n") if l.startswith(";") and "@launch" not in l][:9]
    t1, v1 = gen_k1(opt); t2, v2 = gen_k2(opt)
    n1, n2 = f"{NAME}_kernel", "oproj_kernel"
    s = "\n".join(hdr) + "\n"
    for k in opt.get("list", "12"):
        if k == "1": s += f"; @launch kernel={n1} grid=(512,1,1) block=(256,1,1) lds=81920\n"
        else: s += f"; @launch kernel={n2} grid=(256,1,1) block=(512,1,1) lds=131072\n"
    s += '.amdgcn_target "amdgcn-amd-amdhsa--gfx950"\n.text\n'
    s += khead(n1) + t1 + khead(n2) + t2
    s += '.section .rodata,"a"\n.p2align 6\n' + kdesc(n1, v1) + ".p2align 6\n" + kdesc(n2, v2)
    open(path, "w").write(s)
if __name__ == "__main__":
    opt = json.loads(sys.argv[2]) if len(sys.argv) > 2 else {}
    build(opt, sys.argv[1] if len(sys.argv) > 1 else f"cdna_kernels/{NAME}.s")
```

```python
import math, struct
NAME = "standalone__mha_block_cached__near_ridge"
class Asm:
    def __init__(s): s.l = []
    def __call__(s, t):
        for x in t.strip().split("\n"): s.l.append("    " + x.strip())
    def label(s, n): s.l.append(n + ":")
    def text(s): return "\n".join(s.l) + "\n"
def vr(a, n=1): return f"v{a}" if n == 1 else f"v[{a}:{a+n-1}]"
def sr(a, n=1): return f"s{a}" if n == 1 else f"s[{a}:{a+n-1}]"
def f32(x): return hex(struct.unpack("<I", struct.pack("<f", x))[0])
def mfma(d, a, b, c=None):
    cs = "0" if c == 0 else vr(d, 16)
    return f"v_mfma_f32_32x32x16_bf16 {vr(d,16)}, {vr(a,4)}, {vr(b,4)}, {cs}"
def srd(A, d, p, off, nrec):
    if off is None:
        A(f"s_mov_b32 s{d}, s{p}\ns_mov_b32 s{d+1}, s{p+1}")
    else:
        A(f"s_add_u32 s{d}, s{p}, {off}\ns_addc_u32 s{d+1}, s{p+1}, 0")
    A(f"s_mov_b32 s{d+2}, {nrec}\ns_mov_b32 s{d+3}, 0x00020000")
def kdesc(name, vg, sg=96):
    acc = (vg + 3) // 4 * 4
    return f""".amdhsa_kernel {name}
  .amdhsa_next_free_vgpr {vg}
  .amdhsa_next_free_sgpr {sg}
  .amdhsa_accum_offset {acc}
  .amdhsa_group_segment_fixed_size 0
  .amdhsa_kernarg_size 64
  .amdhsa_user_sgpr_count 2
  .amdhsa_user_sgpr_kernarg_segment_ptr 1
  .amdhsa_system_sgpr_workgroup_id_x 1
.end_amdhsa_kernel
"""
def khead(name):
    return f".globl {name}\n.p2align 8\n.type {name},@function\n{name}:\n"
def interleave(main, fill, start=0, every=1):
    out = []; fi = 0
    for i, m in enumerate(main):
        out.append(m)
        if i >= start and (i - start) % every == 0 and fi < len(fill):
            out.append(fill[fi]); fi += 1
    return out + fill[fi:]
class Stamps:
    def __init__(s, A, on, k): s.A, s.on, s.k, s.n = A, on, k, 0
    def __call__(s):
        if s.on:
            s.A(f"s_memrealtime s[{60+2*s.n}:{61+2*s.n}]\ns_waitcnt lgkmcnt(0)"); s.n += 1
    def flush(s, wsp):
        if not s.on: return
        A = s.A
        A(f"s_and_b32 s58, s2, 256\ns_add_u32 s58, s58, s2\ns_lshl_b32 s58, s58, 6\ns_add_u32 s58, s58, {(64<<20) + s.k*512*64}\ns_add_u32 s56, s{wsp}, s58\ns_addc_u32 s57, s{wsp+1}, 0\nv_mov_b32 v1, 0")
        for i in range(s.n):
            A(f"v_mov_b32 v2, s{60+2*i}\nglobal_store_dword v1, v2, s[56:57] offset:{4*i}")
```

```python
from common import *
from k2 import emit_k2
def gen_k1(opt):
    A = Asm()
    NT = opt.get("nt", " nt")
    O, Q, S, P, F = 0, 64, 96, 128, 144
    X = 64
    AK, AV = 208, 216
    KA0, VA0, WA0 = 220, 221, 222
    DK, DV, DW, DX, XA = 224, 228, 229, 136, 140
    M, MC, AL, L2, T0, T1, CC, VL, OA = 232, 234, 236, 238, 240, 241, 242, 244, 245
    MT = 233
    c = (128 ** -0.5) * math.log2(math.e)
    ts = Stamps(A, opt.get("ts"), 0); ts()
    if ts.on:
        for i in range(62, 92): A(f"s_mov_b32 s{i}, 0")
    A("""s_cmp_ge_u32 s2, 512
    s_cbranch_scc1 K1_END
    s_load_dwordx4 s[24:27], s[0:1], 0
    s_load_dwordx4 s[28:31], s[0:1], 16
    s_load_dwordx2 s[32:33], s[0:1], 56
    s_load_dwordx2 s[52:53], s[0:1], 48
    s_load_dwordx2 s[54:55], s[0:1], 56
    s_and_b32 s3, s2, 3
    s_lshl_b32 s3, s3, 2
    s_bfe_u32 s48, s2, 0x20003
    s_add_u32 s51, s48, s3
    s_lshr_b32 s3, s2, 8
    s_lshl_b32 s3, s3, 4
    s_add_u32 s34, s51, s3
    s_bfe_u32 s3, s2, 0x10002
    s_lshl_b32 s3, s3, 3
    s_bfe_u32 s35, s2, 0x30005
    s_add_u32 s35, s35, s3""")
    A(f"""v_lshrrev_b32 v{T0}, 6, v0
    v_and_b32 v{VL}, 63, v0
    s_lshl_b32 s37, s35, 5
    v_readfirstlane_b32 s36, v{T0}
    s_add_u32 s37, s37, s34
    s_lshl_b32 s37, s37, 18
    s_lshl_b32 s38, s34, 8
    s_mul_i32 s39, s35, 129024
    s_lshl_b32 s40, s36, 12
    s_waitcnt lgkmcnt(0)""")
    srd(A, 12, 30, "s38", 576*8192); A("s_sub_u32 s14, s14, s38")
    srd(A, 16, 24, "s39", 129024)
    if opt.get("xp") == 1: A("s_lshr_b32 s37, s2, 3\ns_lshl_b32 s37, s37, 18")
    if opt.get("xp") == 2: A("s_bfe_u32 s37, s2, 0x20003\ns_lshl_b32 s37, s37, 18")
    if opt.get("xq") == 1: A("s_mov_b32 s18, 0")
    if opt.get("xq") == 2: A("s_mov_b32 s14, 0")
    srd(A, 4, 26, "s37", 262144)
    srd(A, 8, 28, "s37", 262144)
    srd(A, 20, 32, None, 1792*8192)
    A(f"""v_lshrrev_b32 v{T0}, 4, v0
    v_and_b32 v{T1}, 3, v{T0}
    v_lshrrev_b32 v{T0}, 6, v0
    v_lshl_add_u32 v{T0}, v{T0}, 4, v{T1}
    v_and_b32 v{M}, 15, v0
    v_lshlrev_b32 v{MC}, 2, v{T1}
    v_xor_b32 v{MC}, v{MC}, v{M}
    v_lshlrev_b32 v{MC}, 4, v{MC}
    v_lshl_add_u32 v{DW}, v{T0}, 13, v{MC}
    v_lshl_add_u32 v{DV}, v{T0}, 8, v{MC}
    v_xor_b32 v{MC}, v{T1}, v{M}
    v_lshlrev_b32 v{MC}, 4, v{MC}
    v_lshl_add_u32 v{DK}, v{T0}, 8, v{MC}
    v_xor_b32 v{DK+1}, 64, v{DK}
    v_xor_b32 v{DK+2}, 0x80, v{DK}
    v_xor_b32 v{DK+3}, 0xc0, v{DK}
    v_and_b32 v{T0}, 31, v0
    s_lshl_b32 s41, s36, 5
    v_add_u32 v{T0}, s41, v{T0}
    v_lshrrev_b32 v{T1}, 5, v{VL}""")
    for j in range(4):
        A(f"""v_lshrrev_b32 v{M}, 3, v{VL}
        v_add_u32 v{M}, s41, v{M}
        v_add_u32 v{M}, {8*j}, v{M}
        v_min_u32 v{M}, 111, v{M}
        v_mul_u32_u24 v{M}, 1152, v{M}
        v_lshrrev_b32 v{MC}, 4, v{VL}
        v_xor_b32 v{MC}, v{MC}, v{VL}
        v_xor_b32 v{MC}, {(j&1)*4}, v{MC}
        v_and_b32 v{MC}, 7, v{MC}
        v_lshl_add_u32 v{M}, v{MC}, 4, v{M}
        v_subrev_u32 v{DX+j}, {j*1024}, v{M}""")
    WS, XS = [4, 1, 3], [2, 0]
    A(f"s_lshl_b32 s48, s48, 1\ns_and_b32 s49, s35, 7\ns_add_u32 s48, s48, s49\ns_mul_i32 s48, s48, {opt.get('r1',1)}\ns_sub_u32 s49, s48, 9\ns_cselect_b32 s48, s48, s49")
    nxt = "s_lshl_b32 s49, s48, 7\ns_lshl_b32 s50, s48, 19\ns_add_u32 s48, s48, 1\ns_cmp_eq_u32 s48, 9\ns_cselect_b32 s48, 0, s48"
    def issue_x(n):
        return [f"s_add_u32 m0, s40, {XS[n%2]*16384}\ns_nop 0"] + [
            f"buffer_load_dwordx4 v{DX+j}, s[16:19], s49 offen offset:{j*1024} lds" for j in range(4)]
    def issue_w(n):
        r = []
        for j in range(4):
            r.append(f"s_add_u32 m0, s40, {WS[n%3]*16384+j*1024}\ns_add_u32 s42, s50, {j*4*8192}\nbuffer_load_dwordx4 v{DW}, s[12:15], s42 offen lds")
        return r
    def issue_kv(isv, m0, soff):
        r = [f"s_add_u32 m0, s40, {m0}\ns_nop 0"]
        for j in range(4):
            r.append(f"buffer_load_dwordx4 v{DV if isv else DK+j}, s[{8 if isv else 4}:{11 if isv else 7}], {soff} offen offset:{j*1024}{NT} lds")
        return r
    CN, ONE, GO, RD = 246, 247, 223, 231
    def poll(lbl, addr, base, off, sl):
        A.label(lbl)
        A(f"""s_sleep {sl}
        global_load_dword v{AL}, v{addr}, {base} offset:{off} sc1
        s_waitcnt vmcnt(0)
        v_cmp_eq_u32 vcc, 0, v{AL}
        s_cbranch_vccnz {lbl}""")
    def signal(lbl, addr):
        A(f"s_mov_b64 exec, 1\nglobal_store_dword v{addr}, v{ONE}, s[56:57] sc1\ns_mov_b64 exec, -1"); A.label(lbl)
    A(f"""s_add_u32 s56, s54, {16<<20}
    s_addc_u32 s57, s55, 0
    s_lshr_b32 s3, s2, 8
    s_lshl_b32 s3, s3, 4
    s_add_u32 s3, s3, s35
    s_lshl_b32 s3, s3, 5
    s_add_u32 s3, s3, s51
    s_lshl_b32 s3, s3, 2
    v_mov_b32 v{CN}, s3
    s_and_b32 s3, s2, 255
    s_add_u32 s3, s3, 32
    s_lshl_b32 s3, s3, 7
    v_mov_b32 v{GO}, s3
    v_mov_b32 v{ONE}, 1
    v_mov_b32 v{RD}, 0
    s_cmp_lg_u32 s2, 0
    s_cbranch_scc1 K1_NZ
    v_lshlrev_b32 v{AL}, 4, v0
    v_mov_b32 v4, 0
    v_mov_b32 v5, 0
    v_mov_b32 v6, 0
    v_mov_b32 v7, 0
    global_store_dwordx4 v{AL}, v[4:7], s[56:57] sc1
    v_lshlrev_b32 v{AL+1}, 7, v0
    v_add_u32 v{AL+1}, 4096, v{AL+1}
    global_store_dword v{AL+1}, v4, s[56:57] sc1
    s_waitcnt vmcnt(0)
    s_barrier
    s_mov_b64 exec, 1
    global_store_dword v4, v{ONE}, s[52:53] sc1
    global_store_dword v4, v{ONE}, s[52:53] offset:128 sc1
    s_mov_b64 exec, -1""")
    A.label("K1_NZ")
    A("s_cmp_lt_u32 s2, 256\ns_cbranch_scc1 K1_GO\ns_cmp_lg_u32 s36, 0\ns_cbranch_scc1 K1_GOB")
    poll("K1_P0", RD, "s[52:53]", 0, 64)
    poll("K1_P1", GO, "s[56:57]", 0, 16)
    A.label("K1_GOB"); A("s_barrier"); A.label("K1_GO")
    if ts.on:
        ts(); A("s_getreg_b32 s3, hwreg(HW_REG_LDS_ALLOC, 0, 12)\ns_cmp_lg_u32 s3, 0\ns_cselect_b32 s3, 100000, 0\ns_add_u32 s62, s62, s3")
    DL = opt.get("dl", 0)
    for n in range(2):
        if n and DL: A("s_waitcnt vmcnt(0)")
        for x in [nxt] + issue_x(n) + issue_w(n): A(x)
    A(f"""s_mul_i32 s41, s35, 112
    v_cmp_gt_u32 vcc, 112, v{T0}
    v_add_u32 v{T0}, s41, v{T0}
    v_lshrrev_b32 v{OA}, 5, v{T0}
    v_lshlrev_b32 v{OA}, 18, v{OA}
    v_and_b32 v{T0}, 31, v{T0}
    v_lshl_add_u32 v{OA}, v{T0}, 4, v{OA}
    v_lshl_add_u32 v{OA}, v{T1}, 9, v{OA}
    s_lshl_b32 s41, s34, 13
    v_add_u32 v{OA}, s41, v{OA}
    v_mov_b32 v{T0}, 0x7fff0000
    v_cndmask_b32 v{OA}, v{T0}, v{OA}, vcc""")
    A(f"""v_and_b32 v{T0}, 31, v0
    v_lshlrev_b32 v{KA0}, 8, v{T0}
    v_and_b32 v{T0}, 15, v0
    v_xor_b32 v{T0}, v{T0}, v{T1}
    v_lshl_add_u32 v{KA0}, v{T0}, 4, v{KA0}
    v_bfe_u32 v{T0}, v0, 2, 2
    v_mul_u32_u24 v{VA0}, 320, v{T0}
    v_bfe_u32 v{T0}, v0, 4, 1
    v_lshl_add_u32 v{VA0}, v{T0}, 5, v{VA0}
    v_and_b32 v{T0}, 1, v0
    v_lshl_add_u32 v{VA0}, v{T0}, 4, v{VA0}
    v_bfe_u32 v{T0}, v0, 1, 1
    v_lshl_add_u32 v{VA0}, v{T0}, 3, v{VA0}
    v_lshl_add_u32 v{WA0}, v{T1}, 11, v{VA0}
    v_lshl_add_u32 v{VA0}, v{T1}, 10, v{VA0}
    v_mov_b32 v{CC}, {f32(c)}""")
    def taddr(base, slot):
        return [f"v_add_u32 v{AV}, {slot}, v{base}"] + [f"v_xor_b32 v{AV+t}, {hex(64*t)}, v{AV}" for t in range(1, 4)]
    def trreads(step):
        return [f"ds_read_b64_tr_b16 {vr(F+(s*4+t)*4+jr*2,2)}, v{AV+t} offset:{(16*s+step*jr)*256}"
                for s in range(4) for t in range(4) for jr in range(2)]
    A(f"""v_and_b32 v{T0}, 31, v0
    v_lshlrev_b32 v{XA}, 7, v{T0}
    v_add_u32 v{XA}, s40, v{XA}
    v_bfe_u32 v{T0}, v0, 1, 3
    v_xor_b32 v{T0}, v{T0}, v{T1}
    v_lshl_add_u32 v{XA}, v{T0}, 4, v{XA}""")
    for s in range(1, 4): A(f"v_xor_b32 v{XA+s}, {32*s}, v{XA}")
    for n in range(9):
        A("s_waitcnt vmcnt(8)\ns_barrier")
        if n == 0: ts()
        for s in range(4): A(f"ds_read_b128 {vr(X+(n&1)*16+s*4,4)}, v{XA+s} offset:{XS[n%2]*16384}")
        for x in taddr(WA0, WS[n%3]*16384): A(x)
        rd = trreads(4)
        for x in rd[:8]: A(x)
        if n < 7: A(nxt); i1, i2 = issue_w(n+2), issue_x(n+2)
        else:
            A(f"s_mov_b32 s42, {(n-6)*16384}")
            i1, i2 = issue_kv(n-7, WS[(n+2)%3]*16384, "0"), issue_kv(0, XS[n%2]*16384, "s42")
        for i in range(16):
            if 8+2*i < 32: A(rd[8+2*i]); A(rd[9+2*i])
            A(f"s_waitcnt lgkmcnt({min(8, 30-2*i)})")
            A(mfma(O+(i & 3)*16, F+i*4, X+(n&1)*16+(i >> 2)*4, 0 if n == 0 and i < 4 else None))
            if i1: A(i1.pop(0))
            elif i2: A(i2.pop(0))
        if n == 6:
            A(f"v_mov_b32 v{AL}, 1\ns_cmp_lg_u32 s36, 0\ns_cbranch_scc1 K1_NR\nglobal_load_dword v{AL}, v{RD}, s[52:53] offset:128"); A.label("K1_NR")
    A(f"v_cmp_eq_u32 vcc, 0, v{AL}\ns_cbranch_vccz K1_RDY")
    poll("K1_P2", RD, "s[52:53]", 128, 16)
    A.label("K1_RDY")
    A("s_nop 7\ns_nop 4")
    for i in range(32):
        A(f"v_cvt_pk_bf16_f32 v{Q+i}, v{O+2*i}, v{O+2*i+1}")
    for i in range(64): A(f"v_mov_b32 v{O+i}, 0")
    A(f"""v_mov_b32 v{M}, 0xff800000
    v_mov_b32 v{L2}, 0
    v_mov_b32 v{L2+1}, 0
    v_mov_b32 v{MT}, 0xff800000
    s_mov_b32 s43, {3*16384}
    s_mov_b32 s46, 16384
    s_mov_b32 s47, 6""")
    SB = [S, 176]; LA = 6; rare = []
    def enter(kind, wv):
        A(f"""s_mov_b32 s45, s43
        s_add_u32 s43, s43, 16384
        s_cmp_eq_u32 s43, {5*16384}
        s_cselect_b32 s43, 0, s43""")
        A(f"s_waitcnt vmcnt({wv}) lgkmcnt(0)\ns_barrier")
        if kind == "K":
            A(f"v_add_u32 v{AK}, s43, v{KA0}")
            return [(f"v_xor_b32 v{AK+i}, {hex(32*i)}, v{AK}\n" if 0 < i < 8 else "") + f"ds_read_b128 {vr(F+(i&7)*4,4)}, v{AK+(i&7)} offset:{(i>>3)*8192}" for i in range(16)]
        A(f"v_add_u32 v{AV}, s43, v{VA0}")
        return [(f"v_xor_b32 v{AV+i}, {hex(64*i)}, v{AV}\n" if 0 < i < 4 else "") + "\n".join(
            f"ds_read_b64_tr_b16 {vr(F+(i&7)*4+jr*2,2)}, v{AV+(i&3)} offset:{(16*(i>>2)+8*jr)*256}" for jr in range(2)) for i in range(16)]
    def cost(x): return 8 if "v_exp" in x else 4
    def phase(kind, rd, sb, fill, dma, nxt):
        k = 1 if kind == "K" else 2
        tot = sum(cost(x) for x in fill); done = 0; nr = None
        dma = [dma[0] + "\n" + dma[1]] + dma[2:] if dma else []
        for i in range(16):
            if i <= 11: A(f"s_waitcnt lgkmcnt({k*min(LA-1, 15-i)})")
            elif not nxt: A(f"s_waitcnt lgkmcnt({k*(15-i)})")
            if kind == "K": A(mfma(sb+(i >> 3)*16, F+(i&7)*4, Q+(i & 7)*4, 0 if (i & 7) == 0 else None))
            else: A(mfma(O+(i & 3)*16, F+(i&7)*4, P+(i >> 2)*4))
            if i + LA < 16: A(rd[i+LA])
            if nxt and i == 11: nr = enter(*nxt)
            if nxt and i >= 11:
                for j in {11: (0, 1), 12: (2, 3), 13: (4,), 14: (5,), 15: ()}[i]: A(nr[j])
            if dma and i % opt.get("de", 2) == 0: A(dma.pop(0))
            while fill and done < tot * (i+1) / 16:
                done += cost(fill[0]); A(fill.pop(0))
        return nr
    def soft(sb):
        r = []
        for g in range(9):
            if g < 8: r += [f"v_fma_f32 v{sb+4*g+j}, v{sb+4*g+j}, v{CC}, -v{MC}" for j in range(4)]
            if g: r += [f"v_cvt_pk_bf16_f32 v{P+2*g-2+j}, v{sb+4*g-4+2*j}, v{sb+4*g-3+2*j}" for j in range(2)]
            if g < 8: r += [f"v_exp_f32 v{sb+4*g+j}, v{sb+4*g+j}" for j in range(4)]
        r.insert(-2, f"v_add_f32 v{L2}, v{L2}, v{sb}")
        return r + [f"v_add_f32 v{L2+(i&1)}, v{L2+(i&1)}, v{sb+i}" for i in range(1, 32)]
    def maxc(sb):
        r = [f"v_max3_f32 v{T0}, v{sb}, v{sb+1}, v{sb+2}", f"v_max3_f32 v{T1}, v{sb+3}, v{sb+4}, v{M}"]
        for i in range(5, 31, 2):
            t = T0 if ((i >> 1) & 1) == 0 else T1
            r.append(f"v_max3_f32 v{t}, v{t}, v{sb+i}, v{sb+i+1}")
        return r + [f"v_max3_f32 v{T0}, v{T0}, v{T1}, v{sb+31}", f"v_cmp_nle_f32 vcc, v{T0}, v{MT}"]
    def check():
        n = len(rare); rare.append(n)
        A(f"s_cbranch_vccnz K1_RS{n}"); A.label(f"K1_RB{n}")
    NX = opt.get("nx", 58)
    def iteration(i, rd, dk, dv, wv, nxt):
        f = soft(SB[i & 1])
        rd = phase("K", rd, SB[~i & 1], f[:NX], dk, ("V", wv))
        rd = phase("V", rd, 0, f[NX:] + maxc(SB[~i & 1]), dv, nxt)
        check()
        return rd
    ts()
    if opt.get("pr", 1): A("s_setprio 2")
    rd = enter("K", 12)
    for x in rd[:LA]: A(x)
    rd = phase("K", rd, SB[0], [], issue_kv(1, "s45", "s46"), ("K", 12))
    A("s_nop 7\ns_nop 7")
    for x in maxc(SB[0]): A(x)
    check()
    A(f"s_lshr_b32 s3, s2, 8\ns_or_b32 s3, s3, s36\ns_cselect_b32 s50, -1, {6-opt.get('trig', 1)}")
    A.label("K1_LOOP")
    A("s_cmp_lg_u32 s47, s50\ns_cbranch_scc1 K1_NS"); signal("K1_NS", GO)
    adv = "s_add_u32 s46, s46, 16384\ns_add_u32 s44, s46, 16384"
    for i in range(2):
        A(adv); iteration(i, rd, issue_kv(0, "s45", "s44"), issue_kv(1, "s45", "s46"), 12, ("K", 12))
    A("s_sub_u32 s47, s47, 1\ns_cmp_lg_u32 s47, 0\ns_cbranch_scc1 K1_LOOP")
    ts()
    A(adv); iteration(12, rd, issue_kv(0, "s45", "s44"), issue_kv(1, "s45", "s46"), 12, ("K", 12))
    iteration(13, rd, issue_kv(1, "s45", "s44"), None, 12, ("K", 8))
    rd = iteration(14, rd, None, None, 4, ("V", 0))
    f = soft(SB[1])
    for x in f[:NX]: A(x)
    phase("V", rd, 0, f[NX:], None, None)
    ts()
    A(f"""v_add_f32 v{T0}, v{L2}, v{L2+1}
    v_mov_b32 v{T1}, v{T0}
    s_nop 1
    v_permlane32_swap_b32 v{T1}, v{T0}
    s_nop 1
    v_add_f32 v{T0}, v{T0}, v{T1}
    v_rcp_f32 v{AL}, v{T0}
    s_mov_b32 s42, 4096
    s_nop 7""")
    for m in range(8):
        for i in range(0, 8, 2):
            A(f"v_pk_mul_f32 {vr(O+m*8+i,2)}, {vr(O+m*8+i,2)}, {vr(AL,2)} op_sel_hi:[1,0]")
        for i in range(4):
            A(f"v_cvt_pk_bf16_f32 v{S+m*4+i}, v{O+m*8+2*i}, v{O+m*8+2*i+1}")
        A(f"buffer_store_dwordx4 {vr(S+m*4,4)}, v{OA}, s[20:23], {'s42' if m >= 4 else '0'} offen offset:{(m&3)*1024}{opt.get('ost',' sc1')}")
    A(f"s_waitcnt vmcnt(0)\ns_barrier\ns_cmp_lg_u32 s36, 0\ns_cbranch_scc1 K1_NS2")
    signal("K1_NS2", CN); ts()
    A("s_cmp_ge_u32 s2, 256\ns_cbranch_scc1 K1_FLUSH")
    A("s_setprio 0")
    emit_k2(A, opt, ts, VL)
    A.label("K1_FLUSH"); ts.flush(54)
    A.label("K1_END")
    A("s_endpgm")
    for n in rare:
        A.label(f"K1_RS{n}")
        A(f"""v_mov_b32 v{T1}, v{T0}
        s_nop 1
        v_permlane32_swap_b32 v{T1}, v{T0}
        s_nop 1
        v_max_f32 v{T0}, v{T0}, v{T1}
        v_mul_f32 v{MC}, v{CC}, v{T0}
        v_fma_f32 v{AL}, v{M}, v{CC}, -v{MC}
        v_mov_b32 v{M}, v{T0}
        v_exp_f32 v{AL}, v{AL}
        v_add_f32 v{MT}, {f32(opt.get("th", 8)/c)}, v{T0}
        s_nop 7""")
        for i in [L2] + list(range(O, O+64, 2)) if n else []:
            A(f"v_pk_mul_f32 {vr(i,2)}, {vr(i,2)}, {vr(AL,2)} op_sel_hi:[1,0]")
        A(f"s_branch K1_RB{n}")
    return A.text(), 248
```

```python
from common import *
def emit_k2(A, opt, ts, VL):
    PFD = opt.get('pfd', 0); P64 = opt.get('p64', 1)
    NST = opt.get('nst', 4)
    ACC, OF, WF = 0, 64, 128
    VOA, VWD, VR0, VR1, VT, VT2, VP = 160, 161, 162, 163, 164, 165, 166
    A("""s_mov_b32 s32, s36
    s_load_dwordx2 s[24:25], s[0:1], 32
    s_load_dwordx2 s[26:27], s[0:1], 40
    s_load_dwordx2 s[28:29], s[0:1], 56
    s_and_b32 s43, s2, 1
    s_lshl_b32 s3, s43, 5
    s_lshr_b32 s44, s2, 3
    s_add_u32 s3, s3, s44
    s_mul_i32 s31, s3, 9363
    s_lshr_b32 s31, s31, 16
    s_mul_i32 s30, s31, 7
    s_sub_u32 s30, s3, s30
    s_bfe_u32 s45, s2, 0x20001
    s_mul_i32 s45, s45, 7
    s_add_u32 s30, s30, s45""")
    A(f"""s_cmp_ge_u32 s3, 63
    s_cbranch_scc1 K1_FLUSH
    s_mul_i32 s47, s30, {4*9363}
    s_lshr_b32 s48, s47, 16
    s_add_u32 s47, s47, {3*9363}
    s_lshr_b32 s47, s47, 16
    s_sub_u32 s47, s47, s48
    v_lshrrev_b32 v{VP}, 4, v{VL}
    v_and_b32 v{VP}, s47, v{VP}
    v_add_lshl_u32 v{VP}, v{VP}, s48, 5
    v_and_b32 v{VT}, 15, v{VL}
    v_add_lshl_u32 v{VP}, v{VP}, v{VT}, 2
    s_lshl_b32 s33, s30, 19
    s_lshl_b32 s34, s32, 15
    s_add_u32 s33, s33, s34
    s_mul_i32 s34, s32, {512*1152}
    s_lshl_b32 s35, s31, 7
    s_add_u32 s34, s34, s35
    s_lshl_b32 s36, s32, 14
    s_waitcnt lgkmcnt(0)""")
    srd(A, 4, 28, "s33", 262144 + 32768)
    srd(A, 8, 24, "s34", 512*1152)
    A(f"s_sub_u32 s10, s10, s35")
    if opt.get("xk", 0) & 1: A("s_mov_b32 s6, 0")
    if opt.get("xk", 0) & 2: A("s_mov_b32 s10, 0")
    srd(A, 12, 26, None, 1792*1152)
    A(f"""v_lshlrev_b32 v{VOA}, 4, v{VL}
    v_lshrrev_b32 v{VT}, 3, v{VL}
    v_mul_u32_u24 v{VWD}, 1152, v{VT}
    v_lshrrev_b32 v{VT}, 2, v{VL}
    v_and_b32 v{VT}, 4, v{VT}
    v_and_b32 v{VT2}, 7, v{VL}
    v_xor_b32 v{VT}, v{VT}, v{VT2}
    v_lshl_add_u32 v{VWD}, v{VT}, 4, v{VWD}""")
    ra, rb, rw, W = opt.get("r2", [2, 1, 2, 8]); MO, MW = opt.get("m2", [" sc1", ""])
    A(f"s_mul_i32 s40, s31, {ra}\ns_mul_i32 s41, s30, {rb}\ns_add_u32 s40, s40, s41\ns_mul_i32 s46, s32, {rw}\ns_add_u32 s40, s40, s46")
    def issue(st):
        sl = st % NST
        r = [f"s_add_u32 s41, s40, {st}\ns_and_b32 s41, s41, {W-1}\ns_add_u32 s42, s46, {st}\ns_and_b32 s42, s42, {16-W}\ns_or_b32 s41, s41, s42\ns_mul_i32 s42, s41, {32*1152}\ns_lshl_b32 s41, s41, 11"]
        if st % 2 == 0 and PFD: r.insert(0, "s_barrier")
        for ks in range(2):
            for rt in range(2):
                r.append(f"s_add_u32 s37, s41, {rt*262144}\nbuffer_load_dwordx4 {vr(OF+sl*16+(ks*2+rt)*4,4)}, v{VOA}, s[4:7], s37 offen offset:{ks*1024}{MO}")
        for j in range(4):
            r.append(f"s_add_u32 m0, s36, {sl*4096+j*1024}\ns_add_u32 s37, s42, {j*8*1152}\nbuffer_load_dwordx4 v{VWD}, s[8:11], s37 offen{MW} lds")
        return r
    A(f"""v_lshrrev_b32 v{VT}, 5, v{VL}
    v_lshlrev_b32 v{VR0}, 10, v{VT}
    v_bfe_u32 v{VT}, v{VL}, 2, 2
    v_lshl_add_u32 v{VR0}, v{VT}, 7, v{VR0}
    v_lshrrev_b32 v{VT}, 1, v{VT}
    v_lshl_add_u32 v{VR0}, v{VT}, 6, v{VR0}
    v_bfe_u32 v{VT}, v{VL}, 4, 1
    v_lshl_add_u32 v{VR0}, v{VT}, 5, v{VR0}
    v_and_b32 v{VT}, 1, v{VL}
    v_lshl_add_u32 v{VR0}, v{VT}, 4, v{VR0}
    v_bfe_u32 v{VT}, v{VL}, 1, 1
    v_lshl_add_u32 v{VR0}, v{VT}, 3, v{VR0}
    v_add_u32 v{VR0}, s36, v{VR0}
    v_xor_b32 v{VR1}, 64, v{VR0}""")
    for part in range(2):
      if part: A(f"s_add_u32 s4, s4, 131072\ns_addc_u32 s5, s5, 0\ns_add_u32 s8, s8, {2048*1152}\ns_addc_u32 s9, s9, 0")
      for st in range(NST-1):
        r = issue(st)
        for x in r[:1] + r[5:]: A(x)
      A(f"s_cmp_lg_u32 s32, 0\ns_cbranch_scc1 K2_GO{part}")
      A.label(f"K2_POLL{part}")
      A(f"""global_load_dword v{VT}, v{VP}, s[56:57] offset:{2048*part} sc1
      s_waitcnt vmcnt(0)
      v_cmp_eq_u32 vcc, 0, v{VT}
      s_cbranch_vccz K2_GO{part}
      s_sleep {opt.get("sl", 8)}
      s_branch K2_POLL{part}""")
      A.label(f"K2_GO{part}")
      A("s_barrier"); ts()
      for st in range(NST-1):
        for x in issue(st)[:5]: A(x)
      for st in range(16):
        sl = st % NST
        A(f"s_waitcnt vmcnt({sum(4 if k < NST-1 else 8 for k in range(st+1, min(16, st+NST-1)))})")
        wf = WF + (st & 1) * 16
        for ks in range(2):
            for nt in range(2):
                for jr in range(2):
                    A(f"ds_read_b64_tr_b16 {vr(wf+(ks*2+nt)*4+jr*2,2)}, v{VR0+nt} offset:{sl*4096+(16*ks+4*jr)*128}")
        if st + NST - 1 < 16:
            for x in issue(st + NST - 1): A(x)
        for ks in range(2):
            for nt in range(2):
                A(f"s_waitcnt lgkmcnt({6-(ks*2+nt)*2})")
                for rt in range(2):
                    A(mfma(ACC+(nt*2+rt)*16, wf+(ks*2+nt)*4, OF+sl*16+(ks*2+rt)*4, 0 if (st == 0 and ks == 0 and part == 0) else None))
      ts()
    A(f"v_add_u32 v{VT}, s36, v{VOA}\ns_lshl_b32 s37, s32, 12\nv_add_u32 v{VT2}, s37, v{VOA}\ns_nop 7\ns_nop 3")
    for i in range(16):
        A(f"ds_write_b128 v{VT}, {vr(ACC+4*i,4)} offset:{i*1024}")
    A("s_waitcnt lgkmcnt(0)\ns_barrier")
    for w in range(4):
        for c in range(4):
            A(f"ds_read_b128 {vr(w*16+c*4,4)}, v{VT2} offset:{w*16384+c*1024}")
        if w == 2: A("s_waitcnt lgkmcnt(8)")
    A(f"""s_lshl_b32 s37, s30, 6
    s_and_b32 s38, s32, 1
    s_lshl_b32 s38, s38, 5
    s_add_u32 s37, s37, s38
    v_and_b32 v{VT}, 31, v{VL}
    v_add_u32 v{VT}, s37, v{VT}
    v_mul_u32_u24 v{VT}, 1152, v{VT}
    s_lshr_b32 s38, s32, 1
    s_lshl_b32 s38, s38, 6
    s_add_u32 s38, s38, s35
    v_lshrrev_b32 v{VR1}, 5, v{VL}
    v_lshl_add_u32 v{VT}, v{VR1}, 4, v{VT}
    v_add_u32 v{VT}, s38, v{VT}
    s_waitcnt lgkmcnt(0)""")
    for step in (32, 16):
        for i in range(0, step, 2):
            A(f"v_pk_add_f32 {vr(i,2)}, {vr(i,2)}, {vr(i+step,2)}")
    for i in range(8):
        A(f"v_cvt_pk_bf16_f32 v{16+i}, v{2*i}, v{2*i+1}")
    A(f"buffer_store_dwordx4 v[16:19], v{VT}, s[12:15], 0 offen\nbuffer_store_dwordx4 v[20:23], v{VT}, s[12:15], 0 offen offset:32")
    if ts.on: A("s_waitcnt vmcnt(0)")
    ts()
```

```python
import sys, json
sys.path.insert(0, "gen")
from common import *
from k1 import gen_k1
def build(opt, path):
    hdr = [l for l in open(f"cdna_kernels/{NAME}.s.ref").read().split("\n") if l.startswith(";") and "@launch" not in l][:9]
    t1, v1 = gen_k1(opt)
    n1, n2 = f"{NAME}_kernel", "oproj_kernel"
    s = "\n".join(hdr) + "\n"
    kk = "kernel="+n1+" " if opt.get("ls") else ""
    s += f"; @launch {kk}grid=(512,1,1) block=(256,1,1) lds=81920\n"
    s += '.amdgcn_target "amdgcn-amd-amdhsa--gfx950"\n.text\n'
    s += khead(n1) + t1
    s += '.section .rodata,"a"\n.p2align 6\n' + kdesc(n1, v1)
    open(path, "w").write(s)
if __name__ == "__main__":
    opt = json.loads(sys.argv[2]) if len(sys.argv) > 2 else {}
    build(opt, sys.argv[1] if len(sys.argv) > 1 else f"cdna_kernels/{NAME}.s")
```

```python
from common import *
def gen_k1(opt):
    A = Asm()
    NT = opt.get("nt", " nt")
    O, Q, S, P, F = 0, 64, 96, 128, 144
    X = 64
    AK, AV = 208, 216
    KA0, VA0, WA0 = 220, 221, 222
    DK, DV, DW, DX, XA = 224, 228, 229, 136, 140
    M, MC, AL, L2, T0, T1, CC, VL, OA = 232, 234, 236, 238, 240, 241, 242, 244, 245
    c = (128 ** -0.5) * math.log2(math.e)
    ts = Stamps(A, opt.get("ts"), 0); ts()
    A("""s_cmp_ge_u32 s2, 512
    s_cbranch_scc1 K1_END
    s_load_dwordx4 s[24:27], s[0:1], 0
    s_load_dwordx4 s[28:31], s[0:1], 16
    s_load_dwordx2 s[32:33], s[0:1], 56
    s_and_b32 s3, s2, 3
    s_lshl_b32 s3, s3, 3
    s_bfe_u32 s34, s2, 0x30003
    s_add_u32 s34, s34, s3
    s_bfe_u32 s3, s2, 0x10002
    s_lshl_b32 s3, s3, 3
    s_lshr_b32 s35, s2, 6
    s_add_u32 s35, s35, s3""")
    A(f"""v_lshrrev_b32 v{T0}, 6, v0
    v_and_b32 v{VL}, 63, v0
    s_lshl_b32 s37, s35, 5
    v_readfirstlane_b32 s36, v{T0}
    s_add_u32 s37, s37, s34
    s_lshl_b32 s37, s37, 18
    s_lshl_b32 s38, s34, 8
    s_mul_i32 s39, s35, 129024
    s_lshl_b32 s40, s36, 12
    s_waitcnt lgkmcnt(0)""")
    srd(A, 12, 30, "s38", 576*8192); A("s_sub_u32 s14, s14, s38")
    srd(A, 16, 24, "s39", 129024)
    if opt.get("xp") == 1: A("s_lshr_b32 s37, s2, 3\ns_lshl_b32 s37, s37, 18")
    if opt.get("xp") == 2: A("s_bfe_u32 s37, s2, 0x20003\ns_lshl_b32 s37, s37, 18")
    if opt.get("xq") == 1: A("s_mov_b32 s18, 0")
    if opt.get("xq") == 2: A("s_mov_b32 s14, 0")
    srd(A, 4, 26, "s37", 262144)
    srd(A, 8, 28, "s37", 262144)
    srd(A, 20, 32, None, 1792*8192)
    A(f"""v_lshrrev_b32 v{T0}, 4, v0
    v_and_b32 v{T1}, 3, v{T0}
    v_lshrrev_b32 v{T0}, 6, v0
    v_lshl_add_u32 v{T0}, v{T0}, 4, v{T1}
    v_and_b32 v{M}, 15, v0
    v_lshlrev_b32 v{MC}, 2, v{T1}
    v_xor_b32 v{MC}, v{MC}, v{M}
    v_lshlrev_b32 v{MC}, 4, v{MC}
    v_lshl_add_u32 v{DW}, v{T0}, 13, v{MC}
    v_lshl_add_u32 v{DV}, v{T0}, 8, v{MC}
    v_xor_b32 v{MC}, v{T1}, v{M}
    v_lshlrev_b32 v{MC}, 4, v{MC}
    v_lshl_add_u32 v{DK}, v{T0}, 8, v{MC}
    v_xor_b32 v{DK+1}, 64, v{DK}
    v_xor_b32 v{DK+2}, 0x80, v{DK}
    v_xor_b32 v{DK+3}, 0xc0, v{DK}
    v_and_b32 v{T0}, 31, v0
    s_lshl_b32 s41, s36, 5
    v_add_u32 v{T0}, s41, v{T0}
    v_lshrrev_b32 v{T1}, 5, v{VL}""")
    for j in range(4):
        A(f"""v_lshrrev_b32 v{M}, 3, v{VL}
        v_add_u32 v{M}, s41, v{M}
        v_add_u32 v{M}, {8*j}, v{M}
        v_min_u32 v{M}, 111, v{M}
        v_mul_u32_u24 v{M}, 1152, v{M}
        v_lshrrev_b32 v{MC}, 4, v{VL}
        v_xor_b32 v{MC}, v{MC}, v{VL}
        v_xor_b32 v{MC}, {(j&1)*4}, v{MC}
        v_and_b32 v{MC}, 7, v{MC}
        v_lshl_add_u32 v{M}, v{MC}, 4, v{M}
        v_subrev_u32 v{DX+j}, {j*1024}, v{M}""")
    WS, XS = [4, 1, 3], [2, 0]
    A(f"s_and_b32 s48, s34, 7\ns_and_b32 s49, s35, 7\ns_add_u32 s48, s48, s49\ns_mul_i32 s48, s48, {opt.get('r1',1)}\ns_sub_u32 s49, s48, 9\ns_cselect_b32 s48, s48, s49")
    nxt = "s_lshl_b32 s49, s48, 7\ns_lshl_b32 s50, s48, 19\ns_add_u32 s48, s48, 1\ns_cmp_eq_u32 s48, 9\ns_cselect_b32 s48, 0, s48"
    def issue_x(n):
        return [f"s_add_u32 m0, s40, {XS[n%2]*16384}\ns_nop 0"] + [
            f"buffer_load_dwordx4 v{DX+j}, s[16:19], s49 offen offset:{j*1024} lds" for j in range(4)]
    def issue_w(n):
        r = []
        for j in range(4):
            r.append(f"s_add_u32 m0, s40, {WS[n%3]*16384+j*1024}\ns_add_u32 s42, s50, {j*4*8192}\nbuffer_load_dwordx4 v{DW}, s[12:15], s42 offen lds")
        return r
    def issue_kv(isv, m0, soff):
        r = [f"s_add_u32 m0, s40, {m0}\ns_nop 0"]
        for j in range(4):
            r.append(f"buffer_load_dwordx4 v{DV if isv else DK+j}, s[{8 if isv else 4}:{11 if isv else 7}], {soff} offen offset:{j*1024}{NT} lds")
        return r
    if opt.get("prio"): A(f"s_bitcmp1_b32 s2, {opt['prio']}\ns_cbranch_scc1 K1_LO\ns_setprio 2"); A.label("K1_LO")
    DL = opt.get("dl", 0)
    for n in range(2):
        if n and DL: A("s_waitcnt vmcnt(0)")
        for x in [nxt] + issue_x(n) + issue_w(n): A(x)
    A(f"""s_mul_i32 s41, s35, 112
    v_cmp_gt_u32 vcc, 112, v{T0}
    v_add_u32 v{T0}, s41, v{T0}
    v_lshrrev_b32 v{OA}, 5, v{T0}
    v_lshlrev_b32 v{OA}, 18, v{OA}
    v_and_b32 v{T0}, 31, v{T0}
    v_lshl_add_u32 v{OA}, v{T0}, 4, v{OA}
    v_lshl_add_u32 v{OA}, v{T1}, 9, v{OA}
    s_lshl_b32 s41, s34, 13
    v_add_u32 v{OA}, s41, v{OA}
    v_mov_b32 v{T0}, 0x7fff0000
    v_cndmask_b32 v{OA}, v{T0}, v{OA}, vcc""")
    A(f"""v_and_b32 v{T0}, 31, v0
    v_lshlrev_b32 v{KA0}, 8, v{T0}
    v_and_b32 v{T0}, 15, v0
    v_xor_b32 v{T0}, v{T0}, v{T1}
    v_lshl_add_u32 v{KA0}, v{T0}, 4, v{KA0}
    v_bfe_u32 v{T0}, v0, 2, 2
    v_mul_u32_u24 v{VA0}, 320, v{T0}
    v_bfe_u32 v{T0}, v0, 4, 1
    v_lshl_add_u32 v{VA0}, v{T0}, 5, v{VA0}
    v_and_b32 v{T0}, 1, v0
    v_lshl_add_u32 v{VA0}, v{T0}, 4, v{VA0}
    v_bfe_u32 v{T0}, v0, 1, 1
    v_lshl_add_u32 v{VA0}, v{T0}, 3, v{VA0}
    v_lshl_add_u32 v{WA0}, v{T1}, 11, v{VA0}
    v_lshl_add_u32 v{VA0}, v{T1}, 10, v{VA0}
    v_mov_b32 v{CC}, {f32(c)}""")
    def taddr(base, slot):
        return [f"v_add_u32 v{AV}, {slot}, v{base}"] + [f"v_xor_b32 v{AV+t}, {hex(64*t)}, v{AV}" for t in range(1, 4)]
    def trreads(step):
        return [f"ds_read_b64_tr_b16 {vr(F+(s*4+t)*4+jr*2,2)}, v{AV+t} offset:{(16*s+step*jr)*256}"
                for s in range(4) for t in range(4) for jr in range(2)]
    A(f"""v_and_b32 v{T0}, 31, v0
    v_lshlrev_b32 v{XA}, 7, v{T0}
    v_add_u32 v{XA}, s40, v{XA}
    v_bfe_u32 v{T0}, v0, 1, 3
    v_xor_b32 v{T0}, v{T0}, v{T1}
    v_lshl_add_u32 v{XA}, v{T0}, 4, v{XA}""")
    for s in range(1, 4): A(f"v_xor_b32 v{XA+s}, {32*s}, v{XA}")
    for n in range(9):
        A("s_waitcnt vmcnt(8)\ns_barrier")
        if n in (0, 4): ts()
        for s in range(4): A(f"ds_read_b128 {vr(X+(n&1)*16+s*4,4)}, v{XA+s} offset:{XS[n%2]*16384}")
        for x in taddr(WA0, WS[n%3]*16384): A(x)
        rd = trreads(4)
        for x in rd[:8]: A(x)
        if n < 7: A(nxt); i1, i2 = issue_w(n+2), issue_x(n+2)
        else:
            A(f"s_mov_b32 s42, {(n-7)*16384}")
            i1, i2 = issue_kv(0, WS[(n+2)%3]*16384, "s42"), issue_kv(1, XS[n%2]*16384, "s42")
        for i in range(16):
            if 8+2*i < 32: A(rd[8+2*i]); A(rd[9+2*i])
            A(f"s_waitcnt lgkmcnt({min(8, 30-2*i)})")
            A(mfma(O+(i & 3)*16, F+i*4, X+(n&1)*16+(i >> 2)*4, 0 if n == 0 and i < 4 else None))
            if i1: A(i1.pop(0))
            elif i2: A(i2.pop(0))
    A("s_nop 7\ns_nop 4")
    for i in range(32):
        A(f"v_cvt_pk_bf16_f32 v{Q+i}, v{O+2*i}, v{O+2*i+1}")
    for i in range(64): A(f"v_mov_b32 v{O+i}, 0")
    A(f"""v_mov_b32 v{M}, 0xff800000
    v_mov_b32 v{L2}, 0
    v_mov_b32 v{L2+1}, 0
    s_mov_b32 s43, {4*16384}
    s_mov_b32 s44, 0
    s_mov_b32 s45, {3*16384}
    s_mov_b32 s46, {2*16384}
    s_mov_b32 s47, 14""")
    def iteration(wk, wv, load):
        A(f"s_waitcnt vmcnt({wk})\ns_barrier")
        A(f"v_add_u32 v{AK}, s43, v{KA0}")
        for m in range(1, 8): A(f"v_xor_b32 v{AK+m}, {hex(32*m)}, v{AK}")
        rd = [f"ds_read_b128 {vr(F+i*4,4)}, v{AK+(i&7)} offset:{(i>>3)*8192}" for i in range(16)]
        for x in rd[:8]: A(x)
        if load:
            for x in issue_kv(0, "s45", "s46"): A(x)
        for i in range(16):
            if i < 8: A(rd[8+i])
            A(f"s_waitcnt lgkmcnt({min(8, 15-i)})")
            A(mfma(S+(i >> 3)*16, F+i*4, Q+(i & 7)*4, 0 if (i & 7) == 0 else None))
        A(f"s_waitcnt vmcnt({wv})\ns_barrier")
        for x in taddr(VA0, "s44"): A(x)
        if load:
            for x in issue_kv(1, "s43", "s46"): A(x)
        else: A("s_nop 5")
        A(f"""s_mov_b32 s45, s44
        s_add_u32 s43, s44, 16384
        s_cmp_eq_u32 s43, {5*16384}
        s_cselect_b32 s43, 0, s43
        s_add_u32 s44, s43, 16384
        s_cmp_eq_u32 s44, {5*16384}
        s_cselect_b32 s44, 0, s44
        s_add_u32 s46, s46, 16384""")
        rd = trreads(8)
        sm = [f"v_max3_f32 v{T0}, v{S}, v{S+1}, v{S+2}", f"v_max3_f32 v{T1}, v{S+3}, v{S+4}, v{M}"]
        for i in range(5, 31, 2):
            t = T0 if ((i >> 1) & 1) == 0 else T1
            sm.append(f"v_max3_f32 v{t}, v{t}, v{S+i}, v{S+i+1}")
        sm.append(f"v_max3_f32 v{T0}, v{T0}, v{T1}, v{S+31}")
        for x in interleave(sm, rd[:12]): A(x)
        A(f"""v_mov_b32 v{T1}, v{T0}
        s_nop 1
        v_permlane32_swap_b32 v{T1}, v{T0}
        s_nop 1
        v_max_f32 v{T0}, v{T0}, v{T1}
        v_mul_f32 v{MC}, v{CC}, v{T0}
        v_fma_f32 v{AL}, v{M}, v{CC}, -v{MC}
        v_mov_b32 v{M}, v{T0}
        v_exp_f32 v{AL}, v{AL}
        s_waitcnt lgkmcnt(4)""")
        sm = []
        for i in range(0, 32, 2):
            sm.append(f"v_pk_fma_f32 {vr(S+i,2)}, {vr(S+i,2)}, {vr(CC,2)}, {vr(MC,2)} op_sel_hi:[1,0,0] neg_lo:[0,0,1] neg_hi:[0,0,1]")
        sm.append(f"v_pk_mul_f32 {vr(L2,2)}, {vr(L2,2)}, {vr(AL,2)} op_sel_hi:[1,0]")
        for x in interleave(sm, rd[12:22]): A(x)
        A("s_waitcnt lgkmcnt(4)")
        ex = [f"v_exp_f32 v{S+i}, v{S+i}" for i in range(32)]
        sc = [f"v_pk_mul_f32 {vr(O+i,2)}, {vr(O+i,2)}, {vr(AL,2)} op_sel_hi:[1,0]" for i in range(0, 64, 2)]
        for x in interleave(interleave(ex, sc), rd[22:], 0, 2): A(x)
        fin = []
        for i in range(16):
            fin.append(f"v_cvt_pk_bf16_f32 v{P+i}, v{S+2*i}, v{S+2*i+1}")
            fin.append(f"v_pk_add_f32 {vr(L2,2)}, {vr(L2,2)}, {vr(S+2*i,2)}")
        for x in fin[:10]: A(x)
        A("s_waitcnt lgkmcnt(0)")
        fi = 10
        for i in range(16):
            A(mfma(O+(i & 3)*16, F+i*4, P+(i >> 2)*4))
            for x in fin[fi:fi+3]: A(x)
            fi += 3
    ts()
    A.label("K1_LOOP")
    iteration(12, 12, True)
    A("s_sub_u32 s47, s47, 1\ns_cmp_lg_u32 s47, 0\ns_cbranch_scc1 K1_LOOP")
    ts()
    iteration(12, 8, False)
    iteration(4, 0, False)
    ts()
    A(f"""v_add_f32 v{T0}, v{L2}, v{L2+1}
    v_mov_b32 v{T1}, v{T0}
    s_nop 1
    v_permlane32_swap_b32 v{T1}, v{T0}
    s_nop 1
    v_add_f32 v{T0}, v{T0}, v{T1}
    v_rcp_f32 v{AL}, v{T0}
    s_mov_b32 s42, 4096
    s_nop 7""")
    for m in range(8):
        for i in range(0, 8, 2):
            A(f"v_pk_mul_f32 {vr(O+m*8+i,2)}, {vr(O+m*8+i,2)}, {vr(AL,2)} op_sel_hi:[1,0]")
        for i in range(4):
            A(f"v_cvt_pk_bf16_f32 v{S+m*4+i}, v{O+m*8+2*i}, v{O+m*8+2*i+1}")
        A(f"buffer_store_dwordx4 {vr(S+m*4,4)}, v{OA}, s[20:23], {'s42' if m >= 4 else '0'} offen offset:{(m&3)*1024}{opt.get('ost',' sc1')}")
    if ts.on: A("s_waitcnt vmcnt(0)")
    ts(); ts.flush(32)
    A.label("K1_END")
    A("s_endpgm")
    return A.text(), 248
```

```python
from common import *
def gen_k2(opt):
    A = Asm()
    PFD = opt.get('pfd', 0); P64 = opt.get('p64', 1)
    NST = opt.get('nst', 4)
    ACC, OF, WF = 0, 64, 128
    VOA, VWD, VR0, VR1, VT, VT2, VL = 160, 161, 162, 163, 164, 165, 166
    ts = Stamps(A, opt.get("ts"), 1); ts()
    A("""s_cmp_ge_u32 s2, 256
    s_cbranch_scc1 K2_END
    s_load_dwordx2 s[24:25], s[0:1], 32
    s_load_dwordx2 s[26:27], s[0:1], 40
    s_load_dwordx2 s[28:29], s[0:1], 56
    s_and_b32 s43, s2, 1
    s_lshl_b32 s3, s43, 5
    s_lshr_b32 s44, s2, 3
    s_add_u32 s3, s3, s44
    s_mul_i32 s31, s3, 9363
    s_lshr_b32 s31, s31, 16
    s_mul_i32 s30, s31, 7
    s_sub_u32 s30, s3, s30
    s_bfe_u32 s45, s2, 0x20001
    s_mul_i32 s45, s45, 7
    s_add_u32 s30, s30, s45""")
    A(f"""v_lshrrev_b32 v{VT}, 6, v0
    v_and_b32 v{VL}, 63, v0
    s_nop 0
    v_readfirstlane_b32 s32, v{VT}
    s_cmp_eq_u32 s32, 8
    s_cbranch_scc1 K2_PF
    s_cmp_ge_u32 s3, 63
    s_cbranch_scc1 K2_END
    s_lshl_b32 s33, s30, 19
    s_lshl_b32 s34, s32, 15
    s_add_u32 s33, s33, s34
    s_mul_i32 s34, s32, {512*1152}
    s_lshl_b32 s35, s31, 7
    s_add_u32 s34, s34, s35
    s_lshl_b32 s36, s32, 14
    s_waitcnt lgkmcnt(0)""")
    srd(A, 4, 28, "s33", 262144 + 32768)
    srd(A, 8, 24, "s34", 512*1152)
    A(f"s_sub_u32 s10, s10, s35")
    if opt.get("xk", 0) & 1: A("s_mov_b32 s6, 0")
    if opt.get("xk", 0) & 2: A("s_mov_b32 s10, 0")
    srd(A, 12, 26, None, 1792*1152)
    A(f"""v_lshlrev_b32 v{VOA}, 4, v{VL}
    v_lshrrev_b32 v{VT}, 3, v{VL}
    v_mul_u32_u24 v{VWD}, 1152, v{VT}
    v_lshrrev_b32 v{VT}, 2, v{VL}
    v_and_b32 v{VT}, 4, v{VT}
    v_and_b32 v{VT2}, 7, v{VL}
    v_xor_b32 v{VT}, v{VT}, v{VT2}
    v_lshl_add_u32 v{VWD}, v{VT}, 4, v{VWD}""")
    ra, rb, rw, W = opt.get("r2", [1, 1, 1, 4]); MO, MW = opt.get("m2", ["", ""])
    A(f"s_mul_i32 s40, s31, {ra}\ns_mul_i32 s41, s30, {rb}\ns_add_u32 s40, s40, s41\ns_mul_i32 s46, s32, {rw}\ns_add_u32 s40, s40, s46")
    def issue(st):
        sl = st % NST
        r = [f"s_add_u32 s41, s40, {st}\ns_and_b32 s41, s41, {W-1}\ns_add_u32 s42, s46, {st}\ns_and_b32 s42, s42, {16-W}\ns_or_b32 s41, s41, s42\ns_mul_i32 s42, s41, {32*1152}\ns_lshl_b32 s41, s41, 11"]
        if st % 2 == 0 and PFD: r.insert(0, "s_barrier")
        for ks in range(2):
            for rt in range(2):
                r.append(f"s_add_u32 s37, s41, {rt*262144}\nbuffer_load_dwordx4 {vr(OF+sl*16+(ks*2+rt)*4,4)}, v{VOA}, s[4:7], s37 offen offset:{ks*1024}{MO}")
        for j in range(4):
            r.append(f"s_add_u32 m0, s36, {sl*4096+j*1024}\ns_add_u32 s37, s42, {j*8*1152}\nbuffer_load_dwordx4 v{VWD}, s[8:11], s37 offen{MW} lds")
        return r
    for st in range(NST-1):
        for x in issue(st): A(x)
    A(f"""v_lshrrev_b32 v{VT}, 5, v{VL}
    v_lshlrev_b32 v{VR0}, 10, v{VT}
    v_bfe_u32 v{VT}, v{VL}, 2, 2
    v_lshl_add_u32 v{VR0}, v{VT}, 7, v{VR0}
    v_lshrrev_b32 v{VT}, 1, v{VT}
    v_lshl_add_u32 v{VR0}, v{VT}, 6, v{VR0}
    v_bfe_u32 v{VT}, v{VL}, 4, 1
    v_lshl_add_u32 v{VR0}, v{VT}, 5, v{VR0}
    v_and_b32 v{VT}, 1, v{VL}
    v_lshl_add_u32 v{VR0}, v{VT}, 4, v{VR0}
    v_bfe_u32 v{VT}, v{VL}, 1, 1
    v_lshl_add_u32 v{VR0}, v{VT}, 3, v{VR0}
    v_add_u32 v{VR0}, s36, v{VR0}
    v_xor_b32 v{VR1}, 64, v{VR0}""")
    for st in range(16):
        sl = st % NST
        nout = min(NST-2, 15-st) * 8
        A(f"s_waitcnt vmcnt({nout})")
        if st in (0, 8): ts()
        wf = WF + (st & 1) * 16
        for ks in range(2):
            for nt in range(2):
                for jr in range(2):
                    A(f"ds_read_b64_tr_b16 {vr(wf+(ks*2+nt)*4+jr*2,2)}, v{VR0+nt} offset:{sl*4096+(16*ks+4*jr)*128}")
        if st + NST - 1 < 16:
            for x in issue(st + NST - 1): A(x)
        for ks in range(2):
            for nt in range(2):
                A(f"s_waitcnt lgkmcnt({6-(ks*2+nt)*2})")
                for rt in range(2):
                    A(mfma(ACC+(nt*2+rt)*16, wf+(ks*2+nt)*4, OF+sl*16+(ks*2+rt)*4, 0 if (st == 0 and ks == 0) else None))
    ts()
    A(f"v_add_u32 v{VT}, s36, v{VOA}\ns_lshl_b32 s37, s32, 11\nv_add_u32 v{VT2}, s37, v{VOA}\ns_nop 7\ns_nop 3")
    for i in range(16):
        A(f"ds_write_b128 v{VT}, {vr(ACC+4*i,4)} offset:{i*1024}")
    A(f"v_add_u32 v{VR0}, 65536, v{VT2}\ns_waitcnt lgkmcnt(0)\ns_barrier")
    for w in range(8):
        for c in range(2):
            A(f"ds_read_b128 {vr(w*8+c*4,4)}, v{VT2 if w < 4 else VR0} offset:{(w&3)*16384+c*1024}")
        if w == 6: A("s_waitcnt lgkmcnt(8)")
    A(f"""s_lshl_b32 s37, s30, 6
    s_and_b32 s38, s32, 2
    s_lshl_b32 s38, s38, 4
    s_add_u32 s37, s37, s38
    v_and_b32 v{VT}, 31, v{VL}
    v_add_u32 v{VT}, s37, v{VT}
    v_mul_u32_u24 v{VT}, 1152, v{VT}
    s_lshr_b32 s38, s32, 2
    s_lshl_b32 s38, s38, 6
    s_and_b32 s39, s32, 1
    s_lshl_b32 s39, s39, 5
    s_add_u32 s38, s38, s39
    s_add_u32 s38, s38, s35
    v_lshrrev_b32 v{VR1}, 5, v{VL}
    v_lshl_add_u32 v{VT}, v{VR1}, 4, v{VT}
    v_add_u32 v{VT}, s38, v{VT}
    s_waitcnt lgkmcnt(0)""")
    for step in (32, 16, 8):
        for i in range(0, step, 2):
            A(f"v_pk_add_f32 {vr(i,2)}, {vr(i,2)}, {vr(i+step,2)}")
    for i in range(4):
        A(f"v_cvt_pk_bf16_f32 v{8+i}, v{2*i}, v{2*i+1}")
    A(f"buffer_store_dwordx4 v[8:11], v{VT}, s[12:15], 0 offen")
    if ts.on: A("s_waitcnt vmcnt(0)")
    ts(); ts.flush(28)
    A("s_endpgm")
    A.label("K2_PF")
    A("s_lshl_b32 s33, s45, 19\ns_waitcnt lgkmcnt(0)")
    srd(A, 4, 28, "s33", 7*524288)
    srd(A, 8, 24, None, 4096*1152)
    A(f"""v_add_u32 v1, s44, v{VL}
    v_and_b32 v1, 31, v1
    v_lshlrev_b32 v1, 7, v1
    v_lshl_add_u32 v1, v{VL}, 15, v1
    v_add_u32 v2, {56*32768}, v1
    v_and_b32 v3, 7, v{VL}
    v_lshlrev_b32 v3, 8, v3
    v_add_u32 v3, s44, v3
    v_mul_u32_u24 v3, 2304, v3
    v_lshrrev_b32 v4, 3, v{VL}
    v_lshl_add_u32 v3, v4, 7, v3
    s_lshl_b32 s43, s43, 9
    v_add_u32 v3, s43, v3
    v_mov_b32 v5, 0x7fff0000
    v_cmp_gt_u32 vcc, 56, v{VL}
    v_cndmask_b32 v1, v5, v1, vcc
    v_cndmask_b32 v2, v5, v2, vcc
    v_cmp_gt_u32 vcc, 40, v{VL}
    v_cndmask_b32 v3, v5, v3, vcc""")
    def pf(p):
        A(f"""v_add_u32 v6, {p}, v{VL}
        v_and_b32 v6, 7, v6
        v_lshl_add_u32 v12, v6, 12, v1
        v_lshl_add_u32 v13, v6, 12, v2
        v_mul_u32_u24 v6, {64*1152}, v6
        v_add_u32 v14, v6, v3""")
        for o in range(0, 64*(1+P64), 64):
            A(f"""buffer_load_dword v8, v12, s[4:7], 0 offen offset:{o}
            buffer_load_dword v9, v13, s[4:7], 0 offen offset:{o}
            buffer_load_dword v10, v14, s[8:11], 0 offen offset:{o}
            buffer_load_dword v11, v14, s[8:11], 0 offen offset:{o+1152}""")
    for p in range(PFD): pf(p)
    for p in range(8 if PFD else 0):
        A(f"s_waitcnt vmcnt({min(PFD-1, 7-p)*4*(1+P64)})")
        if p + PFD < 8: pf(p + PFD)
        A("s_barrier")
    A.label("K2_END")
    A("s_endpgm")
    return A.text(), 168
```

```python
import sys, json
sys.path.insert(0, "gen")
from common import *
from k1_old import gen_k1
from k2_old import gen_k2
def build(opt, path):
    hdr = [l for l in open(f"cdna_kernels/{NAME}.s.ref").read().split("\n") if l.startswith(";") and "@launch" not in l][:9]
    t1, v1 = gen_k1(opt); t2, v2 = gen_k2(opt)
    n1, n2 = f"{NAME}_kernel", "oproj_kernel"
    s = "\n".join(hdr) + "\n"
    for k in opt.get("list", "12"):
        if k == "1": s += f"; @launch kernel={n1} grid=(512,1,1) block=(256,1,1) lds=81920\n"
        else: s += f"; @launch kernel={n2} grid=(256,1,1) block=(512,1,1) lds=131072\n"
    s += '.amdgcn_target "amdgcn-amd-amdhsa--gfx950"\n.text\n'
    s += khead(n1) + t1 + khead(n2) + t2
    s += '.section .rodata,"a"\n.p2align 6\n' + kdesc(n1, v1) + ".p2align 6\n" + kdesc(n2, v2)
    open(path, "w").write(s)
if __name__ == "__main__":
    opt = json.loads(sys.argv[2]) if len(sys.argv) > 2 else {}
    build(opt, sys.argv[1] if len(sys.argv) > 1 else f"cdna_kernels/{NAME}.s")
```

```python
from common import *
from k2 import emit_k2
def gen_k1(opt):
    A = Asm()
    NT = opt.get("nt", " nt")
    O, Q, S, P, F = 0, 64, 96, 128, 144
    X = 64
    AK, AV = 208, 216
    KA0, VA0, WA0 = 220, 221, 222
    DK, DV, DW, DX, XA = 224, 228, 229, 136, 140
    M, MC, AL, L2, T0, T1, CC, VL, OA = 232, 234, 236, 238, 240, 241, 242, 244, 245
    MT = 233
    c = (128 ** -0.5) * math.log2(math.e)
    ts = Stamps(A, opt.get("ts"), 0); ts()
    if ts.on:
        for i in range(62, 92): A(f"s_mov_b32 s{i}, 0")
    A("""s_cmp_ge_u32 s2, 512
    s_cbranch_scc1 K1_END
    s_load_dwordx4 s[24:27], s[0:1], 0
    s_load_dwordx4 s[28:31], s[0:1], 16
    s_load_dwordx2 s[32:33], s[0:1], 56
    s_load_dwordx2 s[52:53], s[0:1], 48
    s_load_dwordx2 s[54:55], s[0:1], 56
    s_and_b32 s3, s2, 3
    s_lshl_b32 s3, s3, 2
    s_bfe_u32 s48, s2, 0x20003
    s_add_u32 s51, s48, s3
    s_lshr_b32 s3, s2, 8
    s_lshl_b32 s3, s3, 4
    s_add_u32 s34, s51, s3
    s_bfe_u32 s3, s2, 0x10002
    s_lshl_b32 s3, s3, 3
    s_bfe_u32 s35, s2, 0x30005
    s_add_u32 s35, s35, s3""")
    A(f"""v_lshrrev_b32 v{T0}, 6, v0
    v_and_b32 v{VL}, 63, v0
    s_lshl_b32 s37, s35, 5
    v_readfirstlane_b32 s36, v{T0}
    s_add_u32 s37, s37, s34
    s_lshl_b32 s37, s37, 18
    s_lshl_b32 s38, s34, 8
    s_mul_i32 s39, s35, 129024
    s_lshl_b32 s40, s36, 12
    s_waitcnt lgkmcnt(0)""")
    srd(A, 12, 30, "s38", 576*8192); A("s_sub_u32 s14, s14, s38")
    srd(A, 16, 24, "s39", 129024)
    if opt.get("xp") == 1: A("s_lshr_b32 s37, s2, 3\ns_lshl_b32 s37, s37, 18")
    if opt.get("xp") == 2: A("s_bfe_u32 s37, s2, 0x20003\ns_lshl_b32 s37, s37, 18")
    if opt.get("xq") == 1: A("s_mov_b32 s18, 0")
    if opt.get("xq") == 2: A("s_mov_b32 s14, 0")
    srd(A, 4, 26, "s37", 262144)
    srd(A, 8, 28, "s37", 262144)
    srd(A, 20, 32, None, 1792*8192)
    A(f"""v_lshrrev_b32 v{T0}, 4, v0
    v_and_b32 v{T1}, 3, v{T0}
    v_lshrrev_b32 v{T0}, 6, v0
    v_lshl_add_u32 v{T0}, v{T0}, 4, v{T1}
    v_and_b32 v{M}, 15, v0
    v_lshlrev_b32 v{MC}, 2, v{T1}
    v_xor_b32 v{MC}, v{MC}, v{M}
    v_lshlrev_b32 v{MC}, 4, v{MC}
    v_lshl_add_u32 v{DW}, v{T0}, 13, v{MC}
    v_lshl_add_u32 v{DV}, v{T0}, 8, v{MC}
    v_xor_b32 v{MC}, v{T1}, v{M}
    v_lshlrev_b32 v{MC}, 4, v{MC}
    v_lshl_add_u32 v{DK}, v{T0}, 8, v{MC}
    v_xor_b32 v{DK+1}, 64, v{DK}
    v_xor_b32 v{DK+2}, 0x80, v{DK}
    v_xor_b32 v{DK+3}, 0xc0, v{DK}
    v_and_b32 v{T0}, 31, v0
    s_lshl_b32 s41, s36, 5
    v_add_u32 v{T0}, s41, v{T0}
    v_lshrrev_b32 v{T1}, 5, v{VL}""")
    for j in range(4):
        A(f"""v_lshrrev_b32 v{M}, 3, v{VL}
        v_add_u32 v{M}, s41, v{M}
        v_add_u32 v{M}, {8*j}, v{M}
        v_min_u32 v{M}, 111, v{M}
        v_mul_u32_u24 v{M}, 1152, v{M}
        v_lshrrev_b32 v{MC}, 4, v{VL}
        v_xor_b32 v{MC}, v{MC}, v{VL}
        v_xor_b32 v{MC}, {(j&1)*4}, v{MC}
        v_and_b32 v{MC}, 7, v{MC}
        v_lshl_add_u32 v{M}, v{MC}, 4, v{M}
        v_subrev_u32 v{DX+j}, {j*1024}, v{M}""")
    WS, XS = [4, 1, 3], [2, 0]
    A(f"s_lshl_b32 s48, s48, 1\ns_and_b32 s49, s35, 7\ns_add_u32 s48, s48, s49\ns_mul_i32 s48, s48, {opt.get('r1',1)}\ns_sub_u32 s49, s48, 9\ns_cselect_b32 s48, s48, s49")
    nxt = "s_lshl_b32 s49, s48, 7\ns_lshl_b32 s50, s48, 19\ns_add_u32 s48, s48, 1\ns_cmp_eq_u32 s48, 9\ns_cselect_b32 s48, 0, s48"
    def issue_x(n):
        return [f"s_add_u32 m0, s40, {XS[n%2]*16384}\ns_nop 0"] + [
            f"buffer_load_dwordx4 v{DX+j}, s[16:19], s49 offen offset:{j*1024} lds" for j in range(4)]
    def issue_w(n):
        r = []
        for j in range(4):
            r.append(f"s_add_u32 m0, s40, {WS[n%3]*16384+j*1024}\ns_add_u32 s42, s50, {j*4*8192}\nbuffer_load_dwordx4 v{DW}, s[12:15], s42 offen lds")
        return r
    def issue_kv(isv, m0, soff):
        r = [f"s_add_u32 m0, s40, {m0}\ns_nop 0"]
        for j in range(4):
            r.append(f"buffer_load_dwordx4 v{DV if isv else DK+j}, s[{8 if isv else 4}:{11 if isv else 7}], {soff} offen offset:{j*1024}{NT} lds")
        return r
    CN, ONE, GO, RD = 246, 247, 223, 231
    def poll(lbl, addr, base, off, sl):
        A.label(lbl)
        A(f"""s_sleep {sl}
        global_load_dword v{AL}, v{addr}, {base} offset:{off} sc1
        s_waitcnt vmcnt(0)
        v_cmp_eq_u32 vcc, 0, v{AL}
        s_cbranch_vccnz {lbl}""")
    def signal(lbl, addr):
        A(f"s_mov_b64 exec, 1\nglobal_store_dword v{addr}, v{ONE}, s[56:57] sc1\ns_mov_b64 exec, -1"); A.label(lbl)
    A(f"""s_add_u32 s56, s54, {16<<20}
    s_addc_u32 s57, s55, 0
    s_lshr_b32 s3, s2, 8
    s_lshl_b32 s3, s3, 4
    s_add_u32 s3, s3, s35
    s_lshl_b32 s3, s3, 5
    s_add_u32 s3, s3, s51
    s_lshl_b32 s3, s3, 2
    v_mov_b32 v{CN}, s3
    s_and_b32 s3, s2, 255
    s_add_u32 s3, s3, 32
    s_lshl_b32 s3, s3, 7
    v_mov_b32 v{GO}, s3
    v_mov_b32 v{ONE}, 1
    v_mov_b32 v{RD}, 0
    s_cmp_lg_u32 s2, 0
    s_cbranch_scc1 K1_NZ
    v_lshlrev_b32 v{AL}, 4, v0
    v_mov_b32 v4, 0
    v_mov_b32 v5, 0
    v_mov_b32 v6, 0
    v_mov_b32 v7, 0
    global_store_dwordx4 v{AL}, v[4:7], s[56:57] sc1
    v_lshlrev_b32 v{AL+1}, 7, v0
    v_add_u32 v{AL+1}, 4096, v{AL+1}
    global_store_dword v{AL+1}, v4, s[56:57] sc1
    s_waitcnt vmcnt(0)
    s_barrier
    s_mov_b64 exec, 1
    global_store_dword v4, v{ONE}, s[52:53] sc1
    global_store_dword v4, v{ONE}, s[52:53] offset:128 sc1
    s_mov_b64 exec, -1""")
    A.label("K1_NZ")
    A("s_cmp_lt_u32 s2, 256\ns_cbranch_scc1 K1_GO")
    if opt.get("pf"):
        A("s_getpc_b64 s[92:93]"); A.label("K1_PF")
        A("""v_lshlrev_b32 v4, 7, v0
    v_min_u32 v4, K1_END-K1_PF-4, v4
    v_mov_b32 v5, s93
    v_add_co_u32 v4, vcc, s92, v4
    s_nop 1
    v_addc_co_u32 v5, vcc, 0, v5, vcc
    global_load_dword v6, v[4:5], off
    s_waitcnt vmcnt(0)""")
    A("s_cmp_lg_u32 s36, 0\ns_cbranch_scc1 K1_GOB")
    poll("K1_P0", RD, "s[52:53]", 0, 64)
    if not opt.get("ng"): poll("K1_P1", GO, "s[56:57]", 0, 16)
    A.label("K1_GOB"); A("s_barrier"); A.label("K1_GO")
    if ts.on:
        ts(); A("s_getreg_b32 s3, hwreg(HW_REG_LDS_ALLOC, 0, 12)\ns_cmp_lg_u32 s3, 0\ns_cselect_b32 s3, 100000, 0\ns_add_u32 s62, s62, s3")
    DL = opt.get("dl", 0)
    for n in range(2):
        if n and DL: A("s_waitcnt vmcnt(0)")
        for x in [nxt] + issue_x(n) + issue_w(n): A(x)
    A(f"""s_mul_i32 s41, s35, 112
    v_cmp_gt_u32 vcc, 112, v{T0}
    v_add_u32 v{T0}, s41, v{T0}
    v_lshrrev_b32 v{OA}, 5, v{T0}
    v_lshlrev_b32 v{OA}, 18, v{OA}
    v_and_b32 v{T0}, 31, v{T0}
    v_lshl_add_u32 v{OA}, v{T0}, 4, v{OA}
    v_lshl_add_u32 v{OA}, v{T1}, 9, v{OA}
    s_lshl_b32 s41, s34, 13
    v_add_u32 v{OA}, s41, v{OA}
    v_mov_b32 v{T0}, 0x7fff0000
    v_cndmask_b32 v{OA}, v{T0}, v{OA}, vcc""")
    A(f"""v_and_b32 v{T0}, 31, v0
    v_lshlrev_b32 v{KA0}, 8, v{T0}
    v_and_b32 v{T0}, 15, v0
    v_xor_b32 v{T0}, v{T0}, v{T1}
    v_lshl_add_u32 v{KA0}, v{T0}, 4, v{KA0}
    v_bfe_u32 v{T0}, v0, 2, 2
    v_mul_u32_u24 v{VA0}, 320, v{T0}
    v_bfe_u32 v{T0}, v0, 4, 1
    v_lshl_add_u32 v{VA0}, v{T0}, 5, v{VA0}
    v_and_b32 v{T0}, 1, v0
    v_lshl_add_u32 v{VA0}, v{T0}, 4, v{VA0}
    v_bfe_u32 v{T0}, v0, 1, 1
    v_lshl_add_u32 v{VA0}, v{T0}, 3, v{VA0}
    v_lshl_add_u32 v{WA0}, v{T1}, 11, v{VA0}
    v_lshl_add_u32 v{VA0}, v{T1}, 10, v{VA0}
    v_mov_b32 v{CC}, {f32(c)}""")
    def taddr(base, slot):
        return [f"v_add_u32 v{AV}, {slot}, v{base}"] + [f"v_xor_b32 v{AV+t}, {hex(64*t)}, v{AV}" for t in range(1, 4)]
    def trreads(step):
        return [f"ds_read_b64_tr_b16 {vr(F+(s*4+t)*4+jr*2,2)}, v{AV+t} offset:{(16*s+step*jr)*256}"
                for s in range(4) for t in range(4) for jr in range(2)]
    A(f"""v_and_b32 v{T0}, 31, v0
    v_lshlrev_b32 v{XA}, 7, v{T0}
    v_add_u32 v{XA}, s40, v{XA}
    v_bfe_u32 v{T0}, v0, 1, 3
    v_xor_b32 v{T0}, v{T0}, v{T1}
    v_lshl_add_u32 v{XA}, v{T0}, 4, v{XA}""")
    for s in range(1, 4): A(f"v_xor_b32 v{XA+s}, {32*s}, v{XA}")
    for n in range(9):
        A("s_waitcnt vmcnt(8)\ns_barrier")
        if n == 0: ts()
        for s in range(4): A(f"ds_read_b128 {vr(X+(n&1)*16+s*4,4)}, v{XA+s} offset:{XS[n%2]*16384}")
        for x in taddr(WA0, WS[n%3]*16384): A(x)
        rd = trreads(4)
        for x in rd[:8]: A(x)
        if n < 7: A(nxt); i1, i2 = issue_w(n+2), issue_x(n+2)
        else:
            A(f"s_mov_b32 s42, {(n-6)*16384}")
            i1, i2 = issue_kv(n-7, WS[(n+2)%3]*16384, "0"), issue_kv(0, XS[n%2]*16384, "s42")
        for i in range(16):
            if 8+2*i < 32: A(rd[8+2*i]); A(rd[9+2*i])
            A(f"s_waitcnt lgkmcnt({min(8, 30-2*i)})")
            A(mfma(O+(i & 3)*16, F+i*4, X+(n&1)*16+(i >> 2)*4, 0 if n == 0 and i < 4 else None))
            if i1: A(i1.pop(0))
            elif i2: A(i2.pop(0))
        if n == 6:
            A(f"v_mov_b32 v{AL}, 1\ns_cmp_lg_u32 s36, 0\ns_cbranch_scc1 K1_NR\nglobal_load_dword v{AL}, v{RD}, s[52:53] offset:128"); A.label("K1_NR")
    A(f"v_cmp_eq_u32 vcc, 0, v{AL}\ns_cbranch_vccz K1_RDY")
    poll("K1_P2", RD, "s[52:53]", 128, 16)
    A.label("K1_RDY")
    A("s_nop 7\ns_nop 4")
    for i in range(32):
        A(f"v_cvt_pk_bf16_f32 v{Q+i}, v{O+2*i}, v{O+2*i+1}")
    for i in range(64): A(f"v_mov_b32 v{O+i}, 0")
    A(f"""v_mov_b32 v{M}, 0xff800000
    v_mov_b32 v{L2}, 0
    v_mov_b32 v{L2+1}, 0
    v_mov_b32 v{MT}, 0xff800000
    s_mov_b32 s43, {3*16384}
    s_mov_b32 s46, 16384
    s_mov_b32 s47, 6""")
    SB = [S, 176]; LA = 6; rare = []
    def enter(kind, wv):
        A(f"""s_mov_b32 s45, s43
        s_add_u32 s43, s43, 16384
        s_cmp_eq_u32 s43, {5*16384}
        s_cselect_b32 s43, 0, s43""")
        A(f"s_waitcnt vmcnt({wv}) lgkmcnt(0)\ns_barrier")
        if kind == "K":
            A(f"v_add_u32 v{AK}, s43, v{KA0}")
            return [(f"v_xor_b32 v{AK+i}, {hex(32*i)}, v{AK}\n" if 0 < i < 8 else "") + f"ds_read_b128 {vr(F+(i&7)*4,4)}, v{AK+(i&7)} offset:{(i>>3)*8192}" for i in range(16)]
        A(f"v_add_u32 v{AV}, s43, v{VA0}")
        return [(f"v_xor_b32 v{AV+i}, {hex(64*i)}, v{AV}\n" if 0 < i < 4 else "") + "\n".join(
            f"ds_read_b64_tr_b16 {vr(F+(i&7)*4+jr*2,2)}, v{AV+(i&3)} offset:{(16*(i>>2)+8*jr)*256}" for jr in range(2)) for i in range(16)]
    def cost(x): return 8 if "v_exp" in x else 4
    def phase(kind, rd, sb, fill, dma, nxt):
        k = 1 if kind == "K" else 2
        tot = sum(cost(x) for x in fill); done = 0; nr = None
        dma = [dma[0] + "\n" + dma[1]] + dma[2:] if dma else []
        for i in range(16):
            if i <= 11: A(f"s_waitcnt lgkmcnt({k*min(LA-1, 15-i)})")
            elif not nxt: A(f"s_waitcnt lgkmcnt({k*(15-i)})")
            if kind == "K": A(mfma(sb+(i >> 3)*16, F+(i&7)*4, Q+(i & 7)*4, 0 if (i & 7) == 0 else None))
            else: A(mfma(O+(i & 3)*16, F+(i&7)*4, P+(i >> 2)*4))
            if i + LA < 16: A(rd[i+LA])
            if nxt and i == 11: nr = enter(*nxt)
            if nxt and i >= 11:
                for j in {11: (0, 1), 12: (2, 3), 13: (4,), 14: (5,), 15: ()}[i]: A(nr[j])
            if dma and i % opt.get("de", 2) == 0: A(dma.pop(0))
            while fill and done < tot * (i+1) / 16:
                done += cost(fill[0]); A(fill.pop(0))
        return nr
    def soft(sb):
        r = []
        for g in range(9):
            if g < 8: r += [f"v_fma_f32 v{sb+4*g+j}, v{sb+4*g+j}, v{CC}, -v{MC}" for j in range(4)]
            if g: r += [f"v_cvt_pk_bf16_f32 v{P+2*g-2+j}, v{sb+4*g-4+2*j}, v{sb+4*g-3+2*j}" for j in range(2)]
            if g < 8: r += [f"v_exp_f32 v{sb+4*g+j}, v{sb+4*g+j}" for j in range(4)]
        r.insert(-2, f"v_add_f32 v{L2}, v{L2}, v{sb}")
        return r + [f"v_add_f32 v{L2+(i&1)}, v{L2+(i&1)}, v{sb+i}" for i in range(1, 32)]
    def maxc(sb):
        r = [f"v_max3_f32 v{T0}, v{sb}, v{sb+1}, v{sb+2}", f"v_max3_f32 v{T1}, v{sb+3}, v{sb+4}, v{M}"]
        for i in range(5, 31, 2):
            t = T0 if ((i >> 1) & 1) == 0 else T1
            r.append(f"v_max3_f32 v{t}, v{t}, v{sb+i}, v{sb+i+1}")
        return r + [f"v_max3_f32 v{T0}, v{T0}, v{T1}, v{sb+31}", f"v_cmp_nle_f32 vcc, v{T0}, v{MT}"]
    def check():
        n = len(rare); rare.append(n)
        A(f"s_cbranch_vccnz K1_RS{n}"); A.label(f"K1_RB{n}")
    NX = opt.get("nx", 58)
    def iteration(i, rd, dk, dv, wv, nxt):
        f = soft(SB[i & 1])
        rd = phase("K", rd, SB[~i & 1], f[:NX], dk, ("V", wv))
        rd = phase("V", rd, 0, f[NX:] + maxc(SB[~i & 1]), dv, nxt)
        check()
        return rd
    ts()
    if opt.get("pr", 1): A("s_setprio 2")
    rd = enter("K", 12)
    for x in rd[:LA]: A(x)
    rd = phase("K", rd, SB[0], [], issue_kv(1, "s45", "s46"), ("K", 12))
    A("s_nop 7\ns_nop 7")
    for x in maxc(SB[0]): A(x)
    check()
    A(f"s_lshr_b32 s3, s2, 8\ns_or_b32 s3, s3, s36\ns_cselect_b32 s50, -1, {6-opt.get('trig', 1)}")
    A.label("K1_LOOP")
    A("s_cmp_lg_u32 s47, s50\ns_cbranch_scc1 K1_NS"); signal("K1_NS", GO)
    adv = "s_add_u32 s46, s46, 16384\ns_add_u32 s44, s46, 16384"
    for i in range(2):
        A(adv); iteration(i, rd, issue_kv(0, "s45", "s44"), issue_kv(1, "s45", "s46"), 12, ("K", 12))
    A("s_sub_u32 s47, s47, 1\ns_cmp_lg_u32 s47, 0\ns_cbranch_scc1 K1_LOOP")
    ts()
    A(adv); iteration(12, rd, issue_kv(0, "s45", "s44"), issue_kv(1, "s45", "s46"), 12, ("K", 12))
    iteration(13, rd, issue_kv(1, "s45", "s44"), None, 12, ("K", 8))
    rd = iteration(14, rd, None, None, 4, ("V", 0))
    f = soft(SB[1])
    for x in f[:NX]: A(x)
    phase("V", rd, 0, f[NX:], None, None)
    ts()
    A(f"""v_add_f32 v{T0}, v{L2}, v{L2+1}
    v_mov_b32 v{T1}, v{T0}
    s_nop 1
    v_permlane32_swap_b32 v{T1}, v{T0}
    s_nop 1
    v_add_f32 v{T0}, v{T0}, v{T1}
    v_rcp_f32 v{AL}, v{T0}
    s_mov_b32 s42, 4096
    s_nop 7""")
    for m in range(8):
        for i in range(0, 8, 2):
            A(f"v_pk_mul_f32 {vr(O+m*8+i,2)}, {vr(O+m*8+i,2)}, {vr(AL,2)} op_sel_hi:[1,0]")
        for i in range(4):
            A(f"v_cvt_pk_bf16_f32 v{S+m*4+i}, v{O+m*8+2*i}, v{O+m*8+2*i+1}")
        A(f"buffer_store_dwordx4 {vr(S+m*4,4)}, v{OA}, s[20:23], {'s42' if m >= 4 else '0'} offen offset:{(m&3)*1024}{opt.get('ost',' sc1')}")
    A(f"s_waitcnt vmcnt(0)\ns_barrier\ns_cmp_lg_u32 s36, 0\ns_cbranch_scc1 K1_NS2")
    signal("K1_NS2", CN); ts()
    A("s_cmp_ge_u32 s2, 256\ns_cbranch_scc1 K1_FLUSH")
    A("s_setprio 0")
    emit_k2(A, opt, ts, VL)
    A.label("K1_FLUSH"); ts.flush(54)
    A.label("K1_END")
    A("s_endpgm")
    for n in rare:
        A.label(f"K1_RS{n}")
        A(f"""v_mov_b32 v{T1}, v{T0}
        s_nop 1
        v_permlane32_swap_b32 v{T1}, v{T0}
        s_nop 1
        v_max_f32 v{T0}, v{T0}, v{T1}
        v_mul_f32 v{MC}, v{CC}, v{T0}
        v_fma_f32 v{AL}, v{M}, v{CC}, -v{MC}
        v_mov_b32 v{M}, v{T0}
        v_exp_f32 v{AL}, v{AL}
        v_add_f32 v{MT}, {f32(opt.get("th", 8)/c)}, v{T0}
        s_nop 7""")
        for i in [L2] + list(range(O, O+64, 2)) if n else []:
            A(f"v_pk_mul_f32 {vr(i,2)}, {vr(i,2)}, {vr(AL,2)} op_sel_hi:[1,0]")
        A(f"s_branch K1_RB{n}")
    return A.text(), 248
```

```python
from common import *
from k2 import emit_k2
def gen_k1(opt):
    A = Asm()
    NT = opt.get("nt", " nt")
    O, Q, S, P, F = 0, 64, 96, 128, 144
    X = 64
    AK, AV = 208, 216
    KA0, VA0, WA0 = 220, 221, 222
    DK, DV, DW, DX, XA = 224, 228, 229, 136, 140
    M, MC, AL, L2, T0, T1, CC, VL, OA = 232, 234, 236, 238, 240, 241, 242, 244, 245
    MT = 233
    c = (128 ** -0.5) * math.log2(math.e)
    ts = Stamps(A, opt.get("ts"), 0); ts()
    if ts.on:
        for i in range(62, 92): A(f"s_mov_b32 s{i}, 0")
    A("""s_cmp_ge_u32 s2, 512
    s_cbranch_scc1 K1_END
    s_load_dwordx4 s[24:27], s[0:1], 0
    s_load_dwordx4 s[28:31], s[0:1], 16
    s_load_dwordx2 s[32:33], s[0:1], 56
    s_load_dwordx2 s[52:53], s[0:1], 48
    s_load_dwordx2 s[54:55], s[0:1], 56
    s_and_b32 s3, s2, 3
    s_lshl_b32 s3, s3, 2
    s_bfe_u32 s48, s2, 0x20003
    s_add_u32 s51, s48, s3
    s_lshr_b32 s3, s2, 8
    s_lshl_b32 s3, s3, 4
    s_add_u32 s34, s51, s3
    s_bfe_u32 s3, s2, 0x10002
    s_lshl_b32 s3, s3, 3
    s_bfe_u32 s35, s2, 0x30005
    s_add_u32 s35, s35, s3""")
    A(f"""v_lshrrev_b32 v{T0}, 6, v0
    v_and_b32 v{VL}, 63, v0
    s_lshl_b32 s37, s35, 5
    v_readfirstlane_b32 s36, v{T0}
    s_add_u32 s37, s37, s34
    s_lshl_b32 s37, s37, 18
    s_lshl_b32 s38, s34, 8
    s_mul_i32 s39, s35, 129024
    s_lshl_b32 s40, s36, 12
    s_waitcnt lgkmcnt(0)""")
    srd(A, 12, 30, "s38", 576*8192); A("s_sub_u32 s14, s14, s38")
    srd(A, 16, 24, "s39", 129024)
    if opt.get("xp") == 1: A("s_lshr_b32 s37, s2, 3\ns_lshl_b32 s37, s37, 18")
    if opt.get("xp") == 2: A("s_bfe_u32 s37, s2, 0x20003\ns_lshl_b32 s37, s37, 18")
    if opt.get("xq") == 1: A("s_mov_b32 s18, 0")
    if opt.get("xq") == 2: A("s_mov_b32 s14, 0")
    srd(A, 4, 26, "s37", 262144)
    srd(A, 8, 28, "s37", 262144)
    srd(A, 20, 32, None, 1792*8192)
    A(f"""v_lshrrev_b32 v{T0}, 4, v0
    v_and_b32 v{T1}, 3, v{T0}
    v_lshrrev_b32 v{T0}, 6, v0
    v_lshl_add_u32 v{T0}, v{T0}, 4, v{T1}
    v_and_b32 v{M}, 15, v0
    v_lshlrev_b32 v{MC}, 2, v{T1}
    v_xor_b32 v{MC}, v{MC}, v{M}
    v_lshlrev_b32 v{MC}, 4, v{MC}
    v_lshl_add_u32 v{DW}, v{T0}, 13, v{MC}
    v_lshl_add_u32 v{DV}, v{T0}, 8, v{MC}
    v_xor_b32 v{MC}, v{T1}, v{M}
    v_lshlrev_b32 v{MC}, 4, v{MC}
    v_lshl_add_u32 v{DK}, v{T0}, 8, v{MC}
    v_xor_b32 v{DK+1}, 64, v{DK}
    v_xor_b32 v{DK+2}, 0x80, v{DK}
    v_xor_b32 v{DK+3}, 0xc0, v{DK}
    v_and_b32 v{T0}, 31, v0
    s_lshl_b32 s41, s36, 5
    v_add_u32 v{T0}, s41, v{T0}
    v_lshrrev_b32 v{T1}, 5, v{VL}""")
    for j in range(4):
        A(f"""v_lshrrev_b32 v{M}, 3, v{VL}
        v_add_u32 v{M}, s41, v{M}
        v_add_u32 v{M}, {8*j}, v{M}
        v_min_u32 v{M}, 111, v{M}
        v_mul_u32_u24 v{M}, 1152, v{M}
        v_lshrrev_b32 v{MC}, 4, v{VL}
        v_xor_b32 v{MC}, v{MC}, v{VL}
        v_xor_b32 v{MC}, {(j&1)*4}, v{MC}
        v_and_b32 v{MC}, 7, v{MC}
        v_lshl_add_u32 v{M}, v{MC}, 4, v{M}
        v_subrev_u32 v{DX+j}, {j*1024}, v{M}""")
    WS, XS = [4, 1, 3], [2, 0]
    A(f"s_lshl_b32 s48, s48, 1\ns_and_b32 s49, s35, 7\ns_add_u32 s48, s48, s49\ns_mul_i32 s48, s48, {opt.get('r1',1)}\ns_sub_u32 s49, s48, 9\ns_cselect_b32 s48, s48, s49")
    nxt = "s_lshl_b32 s49, s48, 7\ns_lshl_b32 s50, s48, 19\ns_add_u32 s48, s48, 1\ns_cmp_eq_u32 s48, 9\ns_cselect_b32 s48, 0, s48"
    def issue_x(n):
        return [f"s_add_u32 m0, s40, {XS[n%2]*16384}\ns_nop 0"] + [
            f"buffer_load_dwordx4 v{DX+j}, s[16:19], s49 offen offset:{j*1024} lds" for j in range(4)]
    def issue_w(n):
        r = []
        for j in range(4):
            r.append(f"s_add_u32 m0, s40, {WS[n%3]*16384+j*1024}\ns_add_u32 s42, s50, {j*4*8192}\nbuffer_load_dwordx4 v{DW}, s[12:15], s42 offen lds")
        return r
    def issue_kv(isv, m0, soff):
        r = [f"s_add_u32 m0, s40, {m0}\ns_nop 0"]
        for j in range(4):
            r.append(f"buffer_load_dwordx4 v{DV if isv else DK+j}, s[{8 if isv else 4}:{11 if isv else 7}], {soff} offen offset:{j*1024}{NT} lds")
        return r
    CN, ONE, GO, RD = 246, 247, 223, 231
    def poll(lbl, addr, base, off, sl):
        A.label(lbl)
        A(f"""s_sleep {sl}
        global_load_dword v{AL}, v{addr}, {base} offset:{off} sc1
        s_waitcnt vmcnt(0)
        v_cmp_eq_u32 vcc, 0, v{AL}
        s_cbranch_vccnz {lbl}""")
    def signal(lbl, addr):
        A(f"s_mov_b64 exec, 1\nglobal_store_dword v{addr}, v{ONE}, s[56:57] sc1\ns_mov_b64 exec, -1"); A.label(lbl)
    A(f"""s_add_u32 s56, s54, {16<<20}
    s_addc_u32 s57, s55, 0
    s_lshr_b32 s3, s2, 8
    s_lshl_b32 s3, s3, 4
    s_add_u32 s3, s3, s35
    s_lshl_b32 s3, s3, 5
    s_add_u32 s3, s3, s51
    s_lshl_b32 s3, s3, 2
    v_mov_b32 v{CN}, s3
    s_and_b32 s3, s2, 255
    s_add_u32 s3, s3, 32
    s_lshl_b32 s3, s3, 7
    v_mov_b32 v{GO}, s3
    v_mov_b32 v{ONE}, 1
    v_mov_b32 v{RD}, 0
    s_cmp_lg_u32 s2, 0
    s_cbranch_scc1 K1_NZ
    v_lshlrev_b32 v{AL}, 4, v0
    v_mov_b32 v4, 0
    v_mov_b32 v5, 0
    v_mov_b32 v6, 0
    v_mov_b32 v7, 0
    global_store_dwordx4 v{AL}, v[4:7], s[56:57] sc1
    v_lshlrev_b32 v{AL+1}, 7, v0
    v_add_u32 v{AL+1}, 4096, v{AL+1}
    {"" if opt.get("ng") else f"global_store_dword v{AL+1}, v4, s[56:57] sc1"}
    s_waitcnt vmcnt(0)
    s_barrier
    s_mov_b64 exec, 1
    global_store_dword v4, v{ONE}, s[52:53] sc1
    global_store_dword v4, v{ONE}, s[52:53] offset:128 sc1
    s_mov_b64 exec, -1""")
    A.label("K1_NZ")
    if opt.get("pa"): A("s_setprio 3")
    A("s_cmp_lt_u32 s2, 256\ns_cbranch_scc1 K1_GO")
    if opt.get("pa"): A("s_setprio 0")
    if opt.get("pf"):
        A("s_getpc_b64 s[92:93]"); A.label("K1_PF")
        A("""v_lshlrev_b32 v4, 7, v0
    v_min_u32 v4, K1_END-K1_PF-4, v4
    v_mov_b32 v5, s93
    v_add_co_u32 v4, vcc, s92, v4
    s_nop 1
    v_addc_co_u32 v5, vcc, 0, v5, vcc
    global_load_dword v6, v[4:5], off
    s_waitcnt vmcnt(0)""")
    if opt.get("ng", 0) < 2:
        A("s_cmp_lg_u32 s36, 0\ns_cbranch_scc1 K1_GOB")
        poll("K1_P0", RD, "s[52:53]", 0, 64)
    if not opt.get("ng"): poll("K1_P1", GO, "s[56:57]", 0, 16)
    A.label("K1_GOB")
    if opt.get("ng", 0) < 2: A("s_barrier")
    A.label("K1_GO")
    if ts.on:
        ts(); A("s_getreg_b32 s3, hwreg(HW_REG_LDS_ALLOC, 0, 12)\ns_cmp_lg_u32 s3, 0\ns_cselect_b32 s3, 100000, 0\ns_add_u32 s62, s62, s3")
    DL = opt.get("dl", 0)
    for n in range(2):
        if n and DL: A("s_waitcnt vmcnt(0)")
        for x in [nxt] + issue_x(n) + issue_w(n): A(x)
    A(f"""s_mul_i32 s41, s35, 112
    v_cmp_gt_u32 vcc, 112, v{T0}
    v_add_u32 v{T0}, s41, v{T0}
    v_lshrrev_b32 v{OA}, 5, v{T0}
    v_lshlrev_b32 v{OA}, 18, v{OA}
    v_and_b32 v{T0}, 31, v{T0}
    v_lshl_add_u32 v{OA}, v{T0}, 4, v{OA}
    v_lshl_add_u32 v{OA}, v{T1}, 9, v{OA}
    s_lshl_b32 s41, s34, 13
    v_add_u32 v{OA}, s41, v{OA}
    v_mov_b32 v{T0}, 0x7fff0000
    v_cndmask_b32 v{OA}, v{T0}, v{OA}, vcc""")
    A(f"""v_and_b32 v{T0}, 31, v0
    v_lshlrev_b32 v{KA0}, 8, v{T0}
    v_and_b32 v{T0}, 15, v0
    v_xor_b32 v{T0}, v{T0}, v{T1}
    v_lshl_add_u32 v{KA0}, v{T0}, 4, v{KA0}
    v_bfe_u32 v{T0}, v0, 2, 2
    v_mul_u32_u24 v{VA0}, 320, v{T0}
    v_bfe_u32 v{T0}, v0, 4, 1
    v_lshl_add_u32 v{VA0}, v{T0}, 5, v{VA0}
    v_and_b32 v{T0}, 1, v0
    v_lshl_add_u32 v{VA0}, v{T0}, 4, v{VA0}
    v_bfe_u32 v{T0}, v0, 1, 1
    v_lshl_add_u32 v{VA0}, v{T0}, 3, v{VA0}
    v_lshl_add_u32 v{WA0}, v{T1}, 11, v{VA0}
    v_lshl_add_u32 v{VA0}, v{T1}, 10, v{VA0}
    v_mov_b32 v{CC}, {f32(c)}""")
    def taddr(base, slot):
        return [f"v_add_u32 v{AV}, {slot}, v{base}"] + [f"v_xor_b32 v{AV+t}, {hex(64*t)}, v{AV}" for t in range(1, 4)]
    def trreads(step):
        return [f"ds_read_b64_tr_b16 {vr(F+(s*4+t)*4+jr*2,2)}, v{AV+t} offset:{(16*s+step*jr)*256}"
                for s in range(4) for t in range(4) for jr in range(2)]
    A(f"""v_and_b32 v{T0}, 31, v0
    v_lshlrev_b32 v{XA}, 7, v{T0}
    v_add_u32 v{XA}, s40, v{XA}
    v_bfe_u32 v{T0}, v0, 1, 3
    v_xor_b32 v{T0}, v{T0}, v{T1}
    v_lshl_add_u32 v{XA}, v{T0}, 4, v{XA}""")
    for s in range(1, 4): A(f"v_xor_b32 v{XA+s}, {32*s}, v{XA}")
    for n in range(9):
        A("s_waitcnt vmcnt(8)\ns_barrier")
        if n == 0: ts()
        for s in range(4): A(f"ds_read_b128 {vr(X+(n&1)*16+s*4,4)}, v{XA+s} offset:{XS[n%2]*16384}")
        for x in taddr(WA0, WS[n%3]*16384): A(x)
        rd = trreads(4)
        for x in rd[:8]: A(x)
        if n < 7: A(nxt); i1, i2 = issue_w(n+2), issue_x(n+2)
        else:
            A(f"s_mov_b32 s42, {(n-6)*16384}")
            i1, i2 = issue_kv(n-7, WS[(n+2)%3]*16384, "0"), issue_kv(0, XS[n%2]*16384, "s42")
        for i in range(16):
            if 8+2*i < 32: A(rd[8+2*i]); A(rd[9+2*i])
            A(f"s_waitcnt lgkmcnt({min(8, 30-2*i)})")
            A(mfma(O+(i & 3)*16, F+i*4, X+(n&1)*16+(i >> 2)*4, 0 if n == 0 and i < 4 else None))
            if i1: A(i1.pop(0))
            elif i2: A(i2.pop(0))
        if n == 6:
            A(f"v_mov_b32 v{AL}, 1\ns_cmp_lg_u32 s36, 0\ns_cbranch_scc1 K1_NR\nglobal_load_dword v{AL}, v{RD}, s[52:53] offset:128"); A.label("K1_NR")
    A(f"v_cmp_eq_u32 vcc, 0, v{AL}\ns_cbranch_vccz K1_RDY")
    poll("K1_P2", RD, "s[52:53]", 128, 16)
    A.label("K1_RDY")
    A("s_nop 7\ns_nop 4")
    for i in range(32):
        A(f"v_cvt_pk_bf16_f32 v{Q+i}, v{O+2*i}, v{O+2*i+1}")
    for i in range(64): A(f"v_mov_b32 v{O+i}, 0")
    A(f"""v_mov_b32 v{M}, 0xff800000
    v_mov_b32 v{L2}, 0
    v_mov_b32 v{L2+1}, 0
    v_mov_b32 v{MT}, 0xff800000
    s_mov_b32 s43, {3*16384}
    s_mov_b32 s46, 16384
    s_mov_b32 s47, 6""")
    SB = [S, 176]; LA = 6; rare = []
    def enter(kind, wv):
        A(f"""s_mov_b32 s45, s43
        s_add_u32 s43, s43, 16384
        s_cmp_eq_u32 s43, {5*16384}
        s_cselect_b32 s43, 0, s43""")
        A(f"s_waitcnt vmcnt({wv}) lgkmcnt(0)\ns_barrier")
        if kind == "K":
            A(f"v_add_u32 v{AK}, s43, v{KA0}")
            return [(f"v_xor_b32 v{AK+i}, {hex(32*i)}, v{AK}\n" if 0 < i < 8 else "") + f"ds_read_b128 {vr(F+(i&7)*4,4)}, v{AK+(i&7)} offset:{(i>>3)*8192}" for i in range(16)]
        A(f"v_add_u32 v{AV}, s43, v{VA0}")
        return [(f"v_xor_b32 v{AV+i}, {hex(64*i)}, v{AV}\n" if 0 < i < 4 else "") + "\n".join(
            f"ds_read_b64_tr_b16 {vr(F+(i&7)*4+jr*2,2)}, v{AV+(i&3)} offset:{(16*(i>>2)+8*jr)*256}" for jr in range(2)) for i in range(16)]
    def cost(x): return 8 if "v_exp" in x else 4
    def phase(kind, rd, sb, fill, dma, nxt):
        k = 1 if kind == "K" else 2
        tot = sum(cost(x) for x in fill); done = 0; nr = None
        dma = [dma[0] + "\n" + dma[1]] + dma[2:] if dma else []
        for i in range(16):
            if i <= 11: A(f"s_waitcnt lgkmcnt({k*min(LA-1, 15-i)})")
            elif not nxt: A(f"s_waitcnt lgkmcnt({k*(15-i)})")
            if kind == "K": A(mfma(sb+(i >> 3)*16, F+(i&7)*4, Q+(i & 7)*4, 0 if (i & 7) == 0 else None))
            else: A(mfma(O+(i & 3)*16, F+(i&7)*4, P+(i >> 2)*4))
            if i + LA < 16: A(rd[i+LA])
            if nxt and i == 11: nr = enter(*nxt)
            if nxt and i >= 11:
                for j in {11: (0, 1), 12: (2, 3), 13: (4,), 14: (5,), 15: ()}[i]: A(nr[j])
            if dma and i % opt.get("de", 2) == 0: A(dma.pop(0))
            while fill and done < tot * (i+1) / 16:
                done += cost(fill[0]); A(fill.pop(0))
        return nr
    def soft(sb):
        r = []
        for g in range(9):
            if g < 8: r += [f"v_fma_f32 v{sb+4*g+j}, v{sb+4*g+j}, v{CC}, -v{MC}" for j in range(4)]
            if g: r += [f"v_cvt_pk_bf16_f32 v{P+2*g-2+j}, v{sb+4*g-4+2*j}, v{sb+4*g-3+2*j}" for j in range(2)]
            if g < 8: r += [f"v_exp_f32 v{sb+4*g+j}, v{sb+4*g+j}" for j in range(4)]
        r.insert(-2, f"v_add_f32 v{L2}, v{L2}, v{sb}")
        return r + [f"v_add_f32 v{L2+(i&1)}, v{L2+(i&1)}, v{sb+i}" for i in range(1, 32)]
    def maxc(sb):
        r = [f"v_max3_f32 v{T0}, v{sb}, v{sb+1}, v{sb+2}", f"v_max3_f32 v{T1}, v{sb+3}, v{sb+4}, v{M}"]
        for i in range(5, 31, 2):
            t = T0 if ((i >> 1) & 1) == 0 else T1
            r.append(f"v_max3_f32 v{t}, v{t}, v{sb+i}, v{sb+i+1}")
        return r + [f"v_max3_f32 v{T0}, v{T0}, v{T1}, v{sb+31}", f"v_cmp_nle_f32 vcc, v{T0}, v{MT}"]
    def check():
        n = len(rare); rare.append(n)
        A(f"s_cbranch_vccnz K1_RS{n}"); A.label(f"K1_RB{n}")
    NX = opt.get("nx", 58)
    def iteration(i, rd, dk, dv, wv, nxt):
        f = soft(SB[i & 1])
        rd = phase("K", rd, SB[~i & 1], f[:NX], dk, ("V", wv))
        rd = phase("V", rd, 0, f[NX:] + maxc(SB[~i & 1]), dv, nxt)
        check()
        return rd
    ts()
    if opt.get("pa") == 1:
        A("s_cmp_lt_u32 s2, 256\ns_cbranch_scc1 K1_PA\ns_setprio 2"); A.label("K1_PA")
    elif opt.get("pr", 1): A("s_setprio 2")
    rd = enter("K", 12)
    for x in rd[:LA]: A(x)
    rd = phase("K", rd, SB[0], [], issue_kv(1, "s45", "s46"), ("K", 12))
    A("s_nop 7\ns_nop 7")
    for x in maxc(SB[0]): A(x)
    check()
    A(f"s_lshr_b32 s3, s2, 8\ns_or_b32 s3, s3, s36\ns_cselect_b32 s50, -1, {6-opt.get('trig', 1)}")
    A.label("K1_LOOP")
    if not opt.get("ng"):
        A("s_cmp_lg_u32 s47, s50\ns_cbranch_scc1 K1_NS"); signal("K1_NS", GO)
    adv = "s_add_u32 s46, s46, 16384\ns_add_u32 s44, s46, 16384"
    for i in range(2):
        A(adv); iteration(i, rd, issue_kv(0, "s45", "s44"), issue_kv(1, "s45", "s46"), 12, ("K", 12))
    A("s_sub_u32 s47, s47, 1\ns_cmp_lg_u32 s47, 0\ns_cbranch_scc1 K1_LOOP")
    ts()
    A(adv); iteration(12, rd, issue_kv(0, "s45", "s44"), issue_kv(1, "s45", "s46"), 12, ("K", 12))
    iteration(13, rd, issue_kv(1, "s45", "s44"), None, 12, ("K", 8))
    rd = iteration(14, rd, None, None, 4, ("V", 0))
    f = soft(SB[1])
    for x in f[:NX]: A(x)
    phase("V", rd, 0, f[NX:], None, None)
    ts()
    A(f"""v_add_f32 v{T0}, v{L2}, v{L2+1}
    v_mov_b32 v{T1}, v{T0}
    s_nop 1
    v_permlane32_swap_b32 v{T1}, v{T0}
    s_nop 1
    v_add_f32 v{T0}, v{T0}, v{T1}
    v_rcp_f32 v{AL}, v{T0}
    s_mov_b32 s42, 4096
    s_nop 7""")
    for m in range(8):
        for i in range(0, 8, 2):
            A(f"v_pk_mul_f32 {vr(O+m*8+i,2)}, {vr(O+m*8+i,2)}, {vr(AL,2)} op_sel_hi:[1,0]")
        for i in range(4):
            A(f"v_cvt_pk_bf16_f32 v{S+m*4+i}, v{O+m*8+2*i}, v{O+m*8+2*i+1}")
        A(f"buffer_store_dwordx4 {vr(S+m*4,4)}, v{OA}, s[20:23], {'s42' if m >= 4 else '0'} offen offset:{(m&3)*1024}{opt.get('ost',' sc1')}")
    A(f"s_waitcnt vmcnt(0)\ns_barrier\ns_cmp_lg_u32 s36, 0\ns_cbranch_scc1 K1_NS2")
    signal("K1_NS2", CN); ts()
    A("s_cmp_ge_u32 s2, 256\ns_cbranch_scc1 K1_FLUSH")
    A("s_setprio 0")
    emit_k2(A, opt, ts, VL)
    A.label("K1_FLUSH"); ts.flush(54)
    A.label("K1_END")
    A("s_endpgm")
    for n in rare:
        A.label(f"K1_RS{n}")
        A(f"""v_mov_b32 v{T1}, v{T0}
        s_nop 1
        v_permlane32_swap_b32 v{T1}, v{T0}
        s_nop 1
        v_max_f32 v{T0}, v{T0}, v{T1}
        v_mul_f32 v{MC}, v{CC}, v{T0}
        v_fma_f32 v{AL}, v{M}, v{CC}, -v{MC}
        v_mov_b32 v{M}, v{T0}
        v_exp_f32 v{AL}, v{AL}
        v_add_f32 v{MT}, {f32(opt.get("th", 8)/c)}, v{T0}
        s_nop 7""")
        for i in [L2] + list(range(O, O+64, 2)) if n else []:
            A(f"v_pk_mul_f32 {vr(i,2)}, {vr(i,2)}, {vr(AL,2)} op_sel_hi:[1,0]")
        A(f"s_branch K1_RB{n}")
    return A.text(), 248
```

```python
from common import *
def emit_k2(A, opt, ts, VL):
    PFD = opt.get('pfd', 0); P64 = opt.get('p64', 1)
    NST = opt.get('nst', 4)
    ACC, OF, WF = 0, 64, 128
    VOA, VWD, VR0, VR1, VT, VT2, VP = 160, 161, 162, 163, 164, 165, 166
    A("""s_mov_b32 s32, s36
    s_load_dwordx2 s[24:25], s[0:1], 32
    s_load_dwordx2 s[26:27], s[0:1], 40
    s_load_dwordx2 s[28:29], s[0:1], 56
    s_and_b32 s43, s2, 1
    s_lshl_b32 s3, s43, 5
    s_lshr_b32 s44, s2, 3
    s_add_u32 s3, s3, s44
    s_mul_i32 s31, s3, 9363
    s_lshr_b32 s31, s31, 16
    s_mul_i32 s30, s31, 7
    s_sub_u32 s30, s3, s30
    s_bfe_u32 s45, s2, 0x20001
    s_mul_i32 s45, s45, 7
    s_add_u32 s30, s30, s45""")
    A(f"""s_cmp_ge_u32 s3, 63
    s_cbranch_scc1 K1_FLUSH
    s_mul_i32 s47, s30, {4*9363}
    s_lshr_b32 s48, s47, 16
    s_add_u32 s47, s47, {3*9363}
    s_lshr_b32 s47, s47, 16
    s_sub_u32 s47, s47, s48
    v_lshrrev_b32 v{VP}, 4, v{VL}
    v_and_b32 v{VP}, s47, v{VP}
    v_add_lshl_u32 v{VP}, v{VP}, s48, 5
    v_and_b32 v{VT}, 15, v{VL}
    v_add_lshl_u32 v{VP}, v{VP}, v{VT}, 2
    s_lshl_b32 s33, s30, 19
    s_lshl_b32 s34, s32, 15
    s_add_u32 s33, s33, s34
    s_mul_i32 s34, s32, {512*1152}
    s_lshl_b32 s35, s31, 7
    s_add_u32 s34, s34, s35
    s_lshl_b32 s36, s32, 14
    s_waitcnt lgkmcnt(0)""")
    srd(A, 4, 28, "s33", 262144 + 32768)
    srd(A, 8, 24, "s34", 512*1152)
    A(f"s_sub_u32 s10, s10, s35")
    if opt.get("xk", 0) & 1: A("s_mov_b32 s6, 0")
    if opt.get("xk", 0) & 2: A("s_mov_b32 s10, 0")
    srd(A, 12, 26, None, 1792*1152)
    A(f"""v_lshlrev_b32 v{VOA}, 4, v{VL}
    v_lshrrev_b32 v{VT}, 3, v{VL}
    v_mul_u32_u24 v{VWD}, 1152, v{VT}
    v_lshrrev_b32 v{VT}, 2, v{VL}
    v_and_b32 v{VT}, 4, v{VT}
    v_and_b32 v{VT2}, 7, v{VL}
    v_xor_b32 v{VT}, v{VT}, v{VT2}
    v_lshl_add_u32 v{VWD}, v{VT}, 4, v{VWD}""")
    ra, rb, rw, W = opt.get("r2", [2, 1, 2, 8]); MO, MW = opt.get("m2", [" sc1", ""])
    A(f"s_mul_i32 s40, s31, {ra}\ns_mul_i32 s41, s30, {rb}\ns_add_u32 s40, s40, s41\ns_mul_i32 s46, s32, {rw}\ns_add_u32 s40, s40, s46")
    PS, PR = opt.get("ps", 0), 168
    def issue(st, sl=None):
        if sl is None: sl = st % NST
        r = [f"s_add_u32 s41, s40, {st}\ns_and_b32 s41, s41, {W-1}\ns_add_u32 s42, s46, {st}\ns_and_b32 s42, s42, {16-W}\ns_or_b32 s41, s41, s42\ns_mul_i32 s42, s41, {32*1152}\ns_lshl_b32 s41, s41, 11"]
        if st % 2 == 0 and PFD: r.insert(0, "s_barrier")
        for ks in range(2):
            for rt in range(2):
                r.append(f"s_add_u32 s37, s41, {rt*262144}\nbuffer_load_dwordx4 {vr(OF+sl*16+(ks*2+rt)*4,4)}, v{VOA}, s[4:7], s37 offen offset:{ks*1024}{MO}")
        for j in range(4):
            r.append(f"s_add_u32 m0, s36, {sl*4096+j*1024}\ns_add_u32 s37, s42, {j*8*1152}\nbuffer_load_dwordx4 v{VWD}, s[8:11], s37 offen{MW} lds")
        return r
    A(f"""v_lshrrev_b32 v{VT}, 5, v{VL}
    v_lshlrev_b32 v{VR0}, 10, v{VT}
    v_bfe_u32 v{VT}, v{VL}, 2, 2
    v_lshl_add_u32 v{VR0}, v{VT}, 7, v{VR0}
    v_lshrrev_b32 v{VT}, 1, v{VT}
    v_lshl_add_u32 v{VR0}, v{VT}, 6, v{VR0}
    v_bfe_u32 v{VT}, v{VL}, 4, 1
    v_lshl_add_u32 v{VR0}, v{VT}, 5, v{VR0}
    v_and_b32 v{VT}, 1, v{VL}
    v_lshl_add_u32 v{VR0}, v{VT}, 4, v{VR0}
    v_bfe_u32 v{VT}, v{VL}, 1, 1
    v_lshl_add_u32 v{VR0}, v{VT}, 3, v{VR0}
    v_add_u32 v{VR0}, s36, v{VR0}
    v_xor_b32 v{VR1}, 64, v{VR0}""")
    for part in range(2):
      if part: A(f"s_add_u32 s4, s4, 131072\ns_addc_u32 s5, s5, 0\ns_add_u32 s8, s8, {2048*1152}\ns_addc_u32 s9, s9, 0")
      def rdw(wf, sl):
        for ks in range(2):
            for nt in range(2):
                for jr in range(2):
                    A(f"ds_read_b64_tr_b16 {vr(wf+(ks*2+nt)*4+jr*2,2)}, v{VR0+nt} offset:{sl*4096+(16*ks+4*jr)*128}")
      for k in range(PS):
        r = issue(16-PS+k, k)
        for x in r[:1] + r[5:]: A(x)
      for k in range(PS):
        A(f"s_waitcnt vmcnt({4*(PS-1-k)}) lgkmcnt(0)"); rdw(PR+16*k, k)
      if PS: A("s_waitcnt lgkmcnt(0)")
      for st in range(NST-1):
        r = issue(st)
        for x in r[:1] + r[5:]: A(x)
      A(f"s_cmp_lg_u32 s32, 0\ns_cbranch_scc1 K2_GO{part}")
      A.label(f"K2_POLL{part}")
      A(f"""global_load_dword v{VT}, v{VP}, s[56:57] offset:{2048*part} sc1
      s_waitcnt vmcnt(0)
      v_cmp_eq_u32 vcc, 0, v{VT}
      s_cbranch_vccz K2_GO{part}
      s_sleep {opt.get("sl", 8)}
      s_branch K2_POLL{part}""")
      A.label(f"K2_GO{part}")
      A("s_barrier"); ts()
      for st in range(NST-1):
        for x in issue(st)[:5]: A(x)
      for st in range(16):
        sl = st % NST
        A(f"s_waitcnt vmcnt({sum(4 if k < NST-1 or k >= 16-PS else 8 for k in range(st+1, min(16, st+NST-1)))})")
        wf = WF + (st & 1) * 16
        if st >= 16-PS: wf = PR + 16*(st-16+PS)
        else: rdw(wf, sl)
        if st + NST - 1 < 16:
            for x in issue(st + NST - 1)[:5 if st+NST-1 >= 16-PS else 9]: A(x)
        for ks in range(2):
            for nt in range(2):
                A(f"s_waitcnt lgkmcnt({6-(ks*2+nt)*2})")
                for rt in range(2):
                    A(mfma(ACC+(nt*2+rt)*16, wf+(ks*2+nt)*4, OF+sl*16+(ks*2+rt)*4, 0 if (st == 0 and ks == 0 and part == 0) else None))
      ts()
    A(f"v_add_u32 v{VT}, s36, v{VOA}\ns_lshl_b32 s37, s32, 12\nv_add_u32 v{VT2}, s37, v{VOA}\ns_nop 7\ns_nop 3")
    for i in range(16):
        A(f"ds_write_b128 v{VT}, {vr(ACC+4*i,4)} offset:{i*1024}")
    A("s_waitcnt lgkmcnt(0)\ns_barrier")
    for w in range(4):
        for c in range(4):
            A(f"ds_read_b128 {vr(w*16+c*4,4)}, v{VT2} offset:{w*16384+c*1024}")
        if w == 2: A("s_waitcnt lgkmcnt(8)")
    A(f"""s_lshl_b32 s37, s30, 6
    s_and_b32 s38, s32, 1
    s_lshl_b32 s38, s38, 5
    s_add_u32 s37, s37, s38
    v_and_b32 v{VT}, 31, v{VL}
    v_add_u32 v{VT}, s37, v{VT}
    v_mul_u32_u24 v{VT}, 1152, v{VT}
    s_lshr_b32 s38, s32, 1
    s_lshl_b32 s38, s38, 6
    s_add_u32 s38, s38, s35
    v_lshrrev_b32 v{VR1}, 5, v{VL}
    v_lshl_add_u32 v{VT}, v{VR1}, 4, v{VT}
    v_add_u32 v{VT}, s38, v{VT}
    s_waitcnt lgkmcnt(0)""")
    for step in (32, 16):
        for i in range(0, step, 2):
            A(f"v_pk_add_f32 {vr(i,2)}, {vr(i,2)}, {vr(i+step,2)}")
    for i in range(8):
        A(f"v_cvt_pk_bf16_f32 v{16+i}, v{2*i}, v{2*i+1}")
    A(f"buffer_store_dwordx4 v[16:19], v{VT}, s[12:15], 0 offen\nbuffer_store_dwordx4 v[20:23], v{VT}, s[12:15], 0 offen offset:32")
    if ts.on: A("s_waitcnt vmcnt(0)")
    ts()
```
